```python
import torch

def _softmax(x, axis=-1):
    return torch.softmax(x, dim=axis)
def _gelu(x):
    return torch.nn.functional.gelu(x, approximate="tanh")
def _silu(x):
    return torch.nn.functional.silu(x)
def _sigmoid(x):
    return torch.sigmoid(x)
def _layernorm(x, axis=-1, eps=1e-5):
    m = x.mean(dim=axis, keepdim=True)
    v = x.var(dim=axis, keepdim=True, unbiased=False)
    return (x - m) / torch.sqrt(v + eps)
def _scatter_add(tgt, idx, src, axis=0):
    return tgt.clone().index_add_(axis, idx, src)
def _segment_sum(src, seg, n):
    out = torch.zeros((n,) + src.shape[1:], dtype=src.dtype)
    return out.index_add_(0, seg, src)
def _pad(x, pw):
    flat = tuple(v for pair in reversed(pw) for v in pair)
    return torch.nn.functional.pad(x, flat)

kernel_name = 'gated_mix__mha_block_cached__compressed_kv_cla__decode'

def setup_inputs():

    _w = (lambda a: (lambda t: t.to(torch.bfloat16) if t.is_floating_point() else t)(torch.as_tensor(a)))
    def _A_setup():
        B, Sq, D = 2, 1, 512
        H, Sk, Dh = 32, 8192, 128
        return {
            "x": _w((lambda *s: torch.randn(*s, dtype=torch.bfloat16) * 0.05)(B, Sq, D)),
            "k_cache": _w((lambda *s: torch.randn(*s, dtype=torch.bfloat16) * 6.4)(B, H, Sk, Dh)),
            "v_cache": _w((lambda *s: torch.randn(*s, dtype=torch.bfloat16) * 3.2)(B, H, Sk, Dh)),
            "wq": _w((lambda *s: torch.randn(*s, dtype=torch.bfloat16) * 6.4)(D, H * Dh) * (D ** -0.5)),
            "wo": _w((lambda *s: torch.randn(*s, dtype=torch.bfloat16) * 3.2)(H * Dh, D) * ((H * Dh) ** -0.5)),
        }
    _A_in = _A_setup()

    def _B_setup():
        B, H, Sq, Sk, D, M = 2, 32, 1, 8192, 128, 512
        Dc = 4 * D
        return {
            "x": _w((lambda *s: torch.randn(*s, dtype=torch.bfloat16) * 0.05)(B, Sq, M)),
            "c_kv": _w((lambda *s: torch.randn(*s, dtype=torch.bfloat16) * 1.6)(B, Sk, Dc)),
            "w_q": _w((lambda *s: torch.randn(*s, dtype=torch.bfloat16) * 6.4)(M, H, D) * (M ** -0.5)),
            "w_uk": _w((lambda *s: torch.randn(*s, dtype=torch.bfloat16) * 6.4)(Dc, H, D) * (Dc ** -0.5)),
            "w_uv": _w((lambda *s: torch.randn(*s, dtype=torch.bfloat16) * 1.6)(Dc, H, D) * (Dc ** -0.5)),
            "w_o": _w((lambda *s: torch.randn(*s, dtype=torch.bfloat16) * 1.6)(H, D, M) * ((H * D) ** -0.5)),
        }
    _B_in = _B_setup()

    return {
        "A_x": _A_in["x"],
        "A_k_cache": _A_in["k_cache"],
        "A_v_cache": _A_in["v_cache"],
        "A_wq": _A_in["wq"],
        "A_wo": _A_in["wo"],
        "B_x": _B_in["x"],
        "B_c_kv": _B_in["c_kv"],
        "B_w_q": _B_in["w_q"],
        "B_w_uk": _B_in["w_uk"],
        "B_w_uv": _B_in["w_uv"],
        "B_w_o": _B_in["w_o"],
        "gate_w": _w((lambda *s: torch.randn(*s, dtype=torch.bfloat16) * 0.1)(512) * 16.0),
    }

def reference(A_x, A_k_cache, A_v_cache, A_wq, A_wo, B_x, B_c_kv, B_w_q, B_w_uk, B_w_uv, B_w_o, gate_w):
    def _A_ref(x, k_cache, v_cache, wq, wo):
        B, Sq, D = x.shape
        H, Dh = 32, 128
        q = (lambda x, *d: x.permute(*d))((x @ wq).reshape(B, Sq, H, Dh), 0, 2, 1, 3)
        scores = torch.einsum("bhqd,bhkd->bhqk", q, k_cache) * (Dh ** -0.5)
        p = _softmax(scores, axis=-1)
        o = torch.einsum("bhqk,bhkd->bhqd", p, v_cache)
        return (lambda x, *d: x.permute(*d))(o, 0, 2, 1, 3).reshape(B, Sq, H * Dh) @ wo

    def _B_ref(x, c_kv, w_q, w_uk, w_uv, w_o):
        B, Sq, M = x.shape[0], x.shape[1], x.shape[2]
        Sk = c_kv.shape[1]
        H, D = w_q.shape[1], w_q.shape[2]
        q = torch.einsum("bqm,mhd->bhqd", x, w_q)
        k = torch.einsum("bkc,chd->bhkd", c_kv, w_uk)
        v = torch.einsum("bkc,chd->bhkd", c_kv, w_uv)
        scores = torch.einsum("bhqd,bhkd->bhqk", q, k) * (D ** -0.5)
        off = Sk - Sq
        qi = torch.arange(Sq)[:, None]
        kj = torch.arange(Sk)[None, :]
        cmask = kj <= (qi + off)
        scores = torch.where(cmask[None, None], scores, -1e9)
        p = _softmax(scores, axis=-1)
        ctx = torch.einsum("bhqk,bhkd->bhqd", p, v)
        return torch.einsum("bhqd,hdm->bqm", ctx, w_o)

    x = A_x
    g = _sigmoid((x * gate_w).sum(-1, keepdims=True))
    a = _A_ref(x, A_k_cache, A_v_cache, A_wq, A_wo)
    b = _B_ref(x, B_c_kv, B_w_q, B_w_uk, B_w_uv, B_w_o)
    return g * a + (1 - g) * b
```

```python
import re

TRANS = ("v_exp_f32", "v_log_f32", "v_rcp_f32", "v_rsq_f32", "v_sqrt_f32", "v_sin_f32", "v_cos_f32",
         "v_rcp_iflag_f32")
REG_RE = re.compile(r"\b([vas])\[(\d+):(\d+)\]|\b([vas])(\d+)\b|\b(vcc_lo|vcc_hi|vcc|exec_lo|exec_hi|exec|m0|scc)\b")


def regs_of(op):
    out = set()
    for m in REG_RE.finditer(op):
        if m.group(1):
            for n in range(int(m.group(2)), int(m.group(3)) + 1):
                out.add((m.group(1), n))
        elif m.group(4):
            out.add((m.group(4), int(m.group(5))))
        else:
            nm = m.group(6)
            if nm.startswith("vcc"):
                out.add(("s", "vcc"))
            elif nm.startswith("exec"):
                out.add(("s", "exec"))
            else:
                out.add(("s", nm))
    return out


def split_ops(rest):
    ops, depth, cur = [], 0, ""
    for ch in rest:
        if ch == "[":
            depth += 1
        elif ch == "]":
            depth -= 1
        if ch == "," and depth == 0:
            ops.append(cur.strip())
            cur = ""
        else:
            cur += ch
    if cur.strip():
        ops.append(cur.strip())
    return ops


class Ins:
    __slots__ = ("text", "mn", "dst", "src", "kind", "dpp", "trans", "dot", "mfma_pass", "srcc", "ab",
                 "wide_store", "store_data", "opsel", "lanesel")


def parse(text):
    t = text.split(";")[0].strip()
    parts = t.split(None, 1)
    mn = parts[0]
    rest = parts[1] if len(parts) > 1 else ""
    ops = split_ops(rest)
    mods = ""
    if ops:
        last = ops[-1]
        mm = re.match(r"^(\S+)(.*)$", last)
        ops[-1] = mm.group(1)
        mods = mm.group(2)
    I = Ins()
    I.text = text
    I.mn = mn
    I.dpp = ("row_" in mods or "quad_perm" in mods or "wave_" in mods or mn.endswith("_dpp"))
    base = re.sub(r"_(e32|e64|dpp|sdwa)$", "", mn)
    I.trans = base in TRANS
    I.dot = base if base.startswith("v_dot") else None
    I.mfma_pass = 0
    I.srcc = set()
    I.ab = set()
    I.wide_store = False
    I.store_data = set()
    I.opsel = ("op_sel" in mods and not base.startswith("v_pk") and not base.startswith("v_dot")) or "dst_sel" in mods
    I.lanesel = set()
    R = [regs_of(o) for o in ops]
    allr = set().union(*R) if R else set()
    if mn.startswith("v_mfma"):
        I.kind = "mfma"
        I.mfma_pass = 8 if "32x32x16" in mn else 4
        I.dst = R[0]
        I.ab = R[1] | R[2]
        I.srcc = R[3]
        I.src = I.ab | I.srcc
    elif mn.startswith("v_"):
        I.kind = "valu"
        if base.startswith("v_cmpx"):
            I.dst = {("s", "exec")}
            I.src = allr
        elif base.startswith("v_cmp"):
            I.dst = R[0]
            I.src = set().union(*R[1:])
        elif base.startswith("v_permlane") and "swap" in base:
            I.dst = R[0] | R[1]
            I.src = R[0] | R[1]
        elif base in ("v_add_co_u32", "v_addc_co_u32", "v_sub_co_u32", "v_subb_co_u32"):
            I.dst = R[0] | R[1]
            I.src = set().union(*R[2:])
        else:
            I.dst = R[0]
            I.src = set().union(*R[1:]) if len(R) > 1 else set()
            if base in ("v_fmac_f32", "v_mac_f32", "v_dot2c_f32_bf16", "v_pk_fmac_f16", "v_writelane_b32") or I.dpp:
                I.src |= R[0]
            if base == "v_cndmask_b32" and len(ops) == 3:
                I.src.add(("s", "vcc"))
            if base in ("v_readlane_b32", "v_writelane_b32"):
                I.lanesel = R[2]
            if I.dot and base != "v_dot2c_f32_bf16":
                I.srcc = R[3]
            elif I.dot:
                I.srcc = R[0]
    elif mn.startswith(("buffer_", "global_", "flat_")):
        I.kind = "vmem"
        if "load" in mn:
            if " lds" in (" " + mods) or "_lds_" in mn:
                I.dst = set()
                I.src = allr | {("s", "m0")}
            else:
                I.dst = R[0]
                I.src = set().union(*R[1:])
        elif "atomic" in mn:
            if "sc0" in mods:
                I.dst = R[0]
                I.src = set().union(*R[1:])
            else:
                I.dst = set()
                I.src = allr
        else:
            I.dst = set()
            I.src = allr
            I.store_data = R[0] if mn.startswith("buffer_") else R[1]
            I.wide_store = mn.endswith(("x3", "x4"))
    elif mn.startswith("ds_"):
        I.kind = "ds"
        if "read" in mn or "bpermute" in mn or "permute" in mn or "swizzle" in mn or "_rtn" in mn:
            I.dst = R[0]
            I.src = set().union(*R[1:])
        else:
            I.dst = set()
            I.src = allr
    elif mn.startswith("s_"):
        I.kind = "salu"
        if mn.startswith(("s_waitcnt", "s_barrier", "s_nop", "s_endpgm", "s_branch", "s_cbranch", "s_sleep",
                          "s_setprio", "s_cmp", "s_bitcmp", "s_setreg")):
            I.dst = set()
            I.src = allr
        else:
            I.dst = R[0]
            I.src = set().union(*R[1:]) if len(R) > 1 else set()
    else:
        raise ValueError("unknown instruction " + text)
    return I


def isv(r):
    return r[0] in "va"


def need(P, C):
    n = 0
    pv = {r for r in P.dst if isv(r)}
    ps = {r for r in P.dst if r[0] == "s"}
    cread_v = {r for r in C.src if isv(r)}
    cw_v = {r for r in C.dst if isv(r)}
    cread_s = {r for r in C.src if r[0] == "s"}
    cbase = re.sub(r"_(e32|e64|dpp|sdwa)$", "", C.mn)
    if P.kind == "valu":
        if pv & cread_v:
            if C.kind == "valu" and C.dpp:
                n = max(n, 2)
            if C.kind == "mfma":
                n = max(n, 3 if P.dot else 2)
            if cbase.startswith("v_permlane"):
                n = max(n, 2)
            if cbase in ("v_readlane_b32", "v_readfirstlane_b32"):
                n = max(n, 1)
            if P.trans and C.kind in ("valu", "mfma", "vmem", "ds"):
                n = max(n, 1)
            if P.opsel and C.kind == "valu":
                n = max(n, 1)
        if P.opsel and C.kind == "valu" and pv & cw_v:
            n = max(n, 1)
        if P.dot:
            if C.dot == P.dot:
                if pv & (cread_v - C.srcc):
                    n = max(n, 3)
            elif pv & (cread_v | cw_v):
                n = max(n, 3)
        if ps:
            if ("s", "exec") in ps:
                if C.kind == "valu" and C.dpp:
                    n = max(n, 5)
                if C.kind == "mfma" or cbase.startswith("v_permlane") or cbase in (
                        "v_readlane_b32", "v_readfirstlane_b32", "v_writelane_b32"):
                    n = max(n, 4)
                if C.kind == "valu" and ("s", "exec") in cread_s:
                    n = max(n, 2)
            if ps & cread_s:
                if C.kind == "valu":
                    n = max(n, 2)
                if C.kind == "vmem":
                    n = max(n, 5)
            if ps & C.lanesel:
                n = max(n, 4)
    if P.kind == "mfma":
        big = 12 if P.mfma_pass == 8 else 8
        if C.kind == "mfma":
            if pv & C.ab:
                n = max(n, big)
            if pv & C.srcc:
                if not (C.srcc == pv and C.mfma_pass == P.mfma_pass):
                    n = max(n, big - 2)
            elif pv & cw_v:
                n = max(n, big)
        elif C.kind in ("valu", "vmem", "ds"):
            if pv & (cread_v | cw_v):
                n = max(n, big)
        if C.kind == "valu" and P.srcc & cw_v:
            n = max(n, 7 if P.mfma_pass == 8 else 3)
    if P.kind == "vmem" and P.wide_store and P.store_data & cw_v:
        n = max(n, 2)
    if P.kind == "salu" and ("s", "m0") in P.dst and ("s", "m0") in C.src and C.kind in ("vmem", "ds"):
        n = max(n, 1)
    return n


def worst(P):
    if P.kind == "mfma":
        return 12 if P.mfma_pass == 8 else 8
    if P.kind == "valu":
        if any(r[0] == "s" for r in P.dst):
            return 5
        return 3 if P.dot else 2
    if P.kind == "vmem" and P.wide_store:
        return 2
    if P.kind == "salu" and ("s", "m0") in P.dst:
        return 1
    return 0


class Asm:
    WINDOW = 13

    def __init__(self):
        self.out = []
        self.hist = []
        self.nops = 0

    def _advance(self, k):
        self.hist = [(p, d + k) for p, d in self.hist if d + k < self.WINDOW]

    def _nop(self, k):
        while k > 0:
            c = min(k, 16)
            self.out.append(f"  s_nop {c - 1}")
            self._advance(c)
            self.nops += 1
            k -= c

    def flush(self):
        k = 0
        for p, d in self.hist:
            k = max(k, worst(p) - d)
        self._nop(k)
        self.hist = []

    def __call__(self, text):
        for line in text.strip().split("\n"):
            line = line.strip()
            if not line or line.startswith(";"):
                if line:
                    self.out.append("  " + line)
                continue
            self.ins(line)

    def ins(self, line):
        I = parse(line)
        if I.mn.startswith(("s_branch", "s_cbranch")):
            self.flush()
        k = 0
        for p, d in self.hist:
            k = max(k, need(p, I) - d)
        self._nop(k)
        self.out.append("  " + line)
        step = 1
        if I.mn == "s_nop":
            step = int(line.split()[1], 0) + 1
        self._advance(step)
        self.hist.append((I, 0))

    def label(self, name):
        self.flush()
        self.out.append(f"{name}:")

    def raw(self, text):
        self.out.append(text)

    def text(self):
        return "\n".join(self.out) + "\n"


def vr(n, c=1):
    return f"v{n}" if c == 1 else f"v[{n}:{n + c - 1}]"


def ar(n, c=1):
    return f"a{n}" if c == 1 else f"a[{n}:{n + c - 1}]"


def sr(n, c=1):
    return f"s{n}" if c == 1 else f"s[{n}:{n + c - 1}]"
```

```python
import sys
sys.path.insert(0, "dev")
from asmlib import *

MAIN = "gmix_main_kernel"
FIN = "gmix_final_kernel"
LOG2E = "0x3fb8aa3b"
SCALE = "0x3db504f3"
NEGINF = "0xff800000"

WS_QABS = 0x0
WS_BML = 0x10000
WS_AML = 0x20000
WS_BPART = 0x100000
WS_APART = 0x400000
WS_BOUT = 0x480000
WS_STAMP = 0x800000

STG_STRIDE = 272
STG_WAVE = 32 * STG_STRIDE
LDS_XCH = 4 * STG_WAVE
LDS_TOTAL = LDS_XCH + 2 * 16384


class Cnt:
    def __init__(self, a, name, mx):
        self.a, self.name, self.mx, self.p = a, name, mx, []

    def issue(self, tag, text):
        self.a(text)
        self.p.append(tag)
        assert self.name != "vmcnt" or len(self.p) <= 63, "vmcnt overflow"

    def wait(self, tag):
        idx = [i for i, t in enumerate(self.p) if t == tag]
        if not idx:
            return
        n = len(self.p) - idx[-1] - 1
        self.a(f"s_waitcnt {self.name}({min(n, self.mx)})")
        self.p = self.p[idx[-1] + 1:]

    def drain(self):
        self.a(f"s_waitcnt {self.name}(0)")
        self.p = []


def dpp(ctrl, bank="0xf", row="0xf"):
    return f"{ctrl} row_mask:{row} bank_mask:{bank}"


def transpose_reduce(a, S, tmp, m1, m0, step1_done=()):
    for i in range(8):
        if i in step1_done:
            continue
        tr_step1(a, S, i)
    for i in range(4):
        a(f"v_add_f32_dpp v{S[i]}, v{S[i]}, v{S[i]} {dpp('row_half_mirror', '0x5')}")
        a(f"v_add_f32_dpp v{S[i]}, v{S[i+4]}, v{S[i+4]} {dpp('row_half_mirror', '0xa')}")
    for i in range(4):
        a(f"v_add_f32_dpp v{S[i]}, v{S[i]}, v{S[i]} {dpp('quad_perm:[2,3,0,1]')}")
    for i in range(2):
        a(f"v_cndmask_b32 v{S[i]}, v{S[i]}, v{S[i+2]}, {m1}")
    for i in range(2):
        a(f"v_add_f32_dpp v{S[i]}, v{S[i]}, v{S[i]} {dpp('quad_perm:[1,0,3,2]')}")
    a(f"v_cndmask_b32 v{S[0]}, v{S[0]}, v{S[1]}, {m0}")


def tr_step1(a, S, i):
    a(f"v_add_f32_dpp v{S[i]}, v{S[i]}, v{S[i]} {dpp('row_ror:8', '0x3')}")
    a(f"v_add_f32_dpp v{S[i]}, v{S[i+8]}, v{S[i+8]} {dpp('row_ror:8', '0xc')}")


def wave_reduce(a, op, v, t):
    for c in ("row_ror:8", "row_ror:4", "row_ror:2", "row_ror:1"):
        a(f"{op}_dpp v{v}, v{v}, v{v} {dpp(c)}")
    a(f"v_mov_b32 v{t}, v{v}")
    a(f"v_permlane16_swap_b32 v{v}, v{t}")
    a(f"{op} v{v}, v{v}, v{t}")
    a(f"v_mov_b32 v{t}, v{v}")
    a(f"v_permlane32_swap_b32 v{v}, v{t}")
    a(f"{op} v{v}, v{v}, v{t}")


def bf16r(a, v, t=None):
    a(f"v_cvt_pk_bf16_f32 v{v}, v{v}, v{v}")
    a(f"v_lshlrev_b32 v{v}, 16, v{v}")


def srd(a, s, base, off_lo, size, off_hi=None):
    a(f"s_add_u32 s{s}, s{base}, {off_lo}")
    a(f"s_addc_u32 s{s+1}, s{base+1}, {off_hi if off_hi is not None else 0}")
    a(f"s_mov_b32 s{s+2}, {size}")
    a(f"s_mov_b32 s{s+3}, 0x00020000")


class Stamps:
    def __init__(self, a, on, sbase):
        self.a, self.on, self.sbase, self.n = a, on, sbase, 0

    def mark(self):
        if self.on:
            self.a(f"s_memrealtime s[{self.sbase + 2*self.n}:{self.sbase + 2*self.n + 1}]")
            self.a("s_waitcnt lgkmcnt(0)")
            self.n += 1

    def dump(self, wsreg, wave_s):
        if not self.on:
            return
        a = self.a
        a("s_getreg_b32 s3, hwreg(HW_REG_HW_ID)")
        a(f"s_mov_b32 s{self.sbase+14}, s3")
        a("s_getreg_b32 s3, hwreg(HW_REG_XCC_ID)")
        a(f"s_mov_b32 s{self.sbase+15}, s3")
        for i in range(16):
            a(f"v_mov_b32 v{i+4}, s{self.sbase+i}")
        a("s_lshl_b32 s3, s2, 2")
        a(f"s_add_u32 s3, s3, s{wave_s}")
        a("s_lshl_b32 s3, s3, 6")
        a(f"s_add_u32 s3, s3, {WS_STAMP}")
        a("v_mov_b32 v1, s3")
        a("s_mov_b64 exec, 1")
        for i in range(4):
            a(f"global_store_dwordx4 v1, v[{4+4*i}:{7+4*i}], s[{wsreg}:{wsreg+1}] offset:{16*i}")


def gen_A(a, P):
    D = P["D"]
    WN = " nt" if P["w_nt"] else ""
    vm = Cnt(a, "vmcnt", 63)
    lg = Cnt(a, "lgkmcnt", 15)
    st = Stamps(a, P["stamps"], 64)
    VL1, VM_, VG, VO = 1, 2, 3, 4
    MASK, Q, BC, ACC = 8, 12, 16, 24
    MRUN, LRUN, PP, T = 28, 29, 30, 31
    S = list(range(32, 48))
    X, VWQ, VWO, T2, T3, T4, T5 = 48, 52, 53, 54, 55, 56, 57
    VL3, VST = 62, 63
    RING = 64
    sX, sK, sV, sWQ, sWO, sWS = 4, 6, 8, 10, 12, 14
    rK, rV, rWQ, rWO = 16, 20, 24, 28
    sW, sH, sB, sSP, sC, sCN, sIT, sT, sT2, sUNIT = 32, 33, 34, 35, 36, 37, 38, 39, 40, 41
    sM1, sM0 = "s[44:45]", "s[46:47]"
    st.mark()
    a("s_load_dwordx8 s[4:11], s[0:1], 0")
    a("s_load_dwordx2 s[12:13], s[0:1], 32")
    a("s_load_dwordx2 s[14:15], s[0:1], 112")
    a("s_sub_u32 s3, s2, 64")
    a(f"s_and_b32 s{sH}, s3, 7")
    a(f"s_lshl_b32 s{sH}, s{sH}, 2")
    a(f"s_lshr_b32 s{sT}, s3, 6")
    a(f"s_add_u32 s{sH}, s{sH}, s{sT}")
    a(f"s_bfe_u32 s{sB}, s3, 0x10005")
    a(f"s_bfe_u32 s{sSP}, s3, 0x20003")
    a("v_lshrrev_b32 v1, 6, v0")
    a(f"v_readfirstlane_b32 s{sW}, v1")
    a("v_and_b32 v1, 63, v0")
    a(f"v_and_b32 v{VM_}, 15, v0")
    a(f"v_bfe_u32 v{VG}, v0, 4, 2")
    a(f"s_lshl_b32 s{sUNIT}, s{sB}, 5")
    a(f"s_add_u32 s{sUNIT}, s{sUNIT}, s{sH}")
    a(f"s_lshl_b32 s{sUNIT}, s{sUNIT}, 2")
    a(f"s_add_u32 s{sUNIT}, s{sUNIT}, s{sSP}")
    a(f"s_lshl_b32 s{sT}, s{sUNIT}, 19")
    a(f"s_lshl_b32 s{sT2}, s{sH}, 8")
    a(f"v_lshl_add_u32 v{T}, v{VG}, 5, v{VM_}")
    a(f"s_lshl_b32 s3, s{sW}, 7")
    a(f"v_add_u32 v{T}, s3, v{T}")
    a(f"s_lshl_b32 s3, s{sB}, 9")
    a(f"v_add_lshl_u32 v{T2}, v{T}, s3, 1")
    a(f"v_sub_u32 v{T}, v{T}, v{VM_}")
    a(f"v_lshlrev_b32 v{T}, 13, v{T}")
    a(f"v_lshl_add_u32 v{VWQ}, v{VM_}, 4, v{T}")
    a(f"s_lshl_b32 s3, s{sW}, 14")
    a(f"v_lshl_add_u32 v{VO}, v1, 4, s3")
    for k in range(1, 4):
        a(f"v_add_u32 v{VO+k}, {4096*k}, v{VO}")
    a("s_mov_b32 s42, 0")
    a("s_waitcnt lgkmcnt(0)")
    vm.issue("x", f"global_load_ushort v{X}, v{T2}, s[{sX}:{sX+1}]")
    vm.issue("x", f"global_load_ushort v{X+1}, v{T2}, s[{sX}:{sX+1}] offset:32")
    srd(a, rK, sK, f"s{sT}", 0x80000)
    srd(a, rWQ, sWQ, f"s{sT2}", 0x400000 - 0x2000 + 256)

    def kload(i, soff):
        vm.issue(f"K{i}", f"buffer_load_dwordx4 {vr(RING+4*i,4)}, v{VO + i//4}, s[{rK}:{rK+3}], {soff} offen offset:{(i%4)*1024} nt")

    def vload(i, soff):
        vm.issue(f"V{i}", f"buffer_load_dwordx4 {vr(RING+4*i,4)}, v{VO + i//4}, s[{rV}:{rV+3}], {soff} offen offset:{(i%4)*1024} nt")

    nK0first = P["k_first"]
    for i in range(nK0first):
        kload(i, "0")
    for i in range(32):
        vm.issue(f"wq{i}", f"buffer_load_dwordx4 {ar(4*i,4)}, v{VWQ}, s[{rWQ}:{rWQ+3}], s42 offen{WN}")
        if i < 31:
            a("s_add_u32 s42, s42, 0x2000")
    for i in range(nK0first, 16):
        kload(i, "0")
    srd(a, rV, sV, f"s{sT}", 0x80000)
    a(f"s_lshl_b32 s{sT2}, s{sH}, 17")
    srd(a, rWO, sWO, f"s{sT2}", 0x20000)
    a(f"v_and_b32 v{T}, 1, v{VM_}")
    a(f"v_lshlrev_b32 v{T}, 4, v{T}")
    a(f"v_mov_b32 v{T3}, 0xffff")
    a(f"v_lshlrev_b32 v{T3}, v{T}, v{T3}")
    a(f"v_bfe_u32 v{T}, v{VM_}, 1, 2")
    for r in range(4):
        a(f"v_cmp_eq_u32 vcc, {r}, v{T}")
        a(f"v_cndmask_b32 v{MASK+r}, 0, v{T3}, vcc")
    a("s_mov_b32 s44, 0xcccccccc")
    a("s_mov_b32 s45, 0xcccccccc")
    a("s_mov_b32 s46, 0xaaaaaaaa")
    a("s_mov_b32 s47, 0xaaaaaaaa")
    a(f"s_lshl_b32 s3, s{sW}, 8")
    a(f"v_lshl_add_u32 v{T}, v{VM_}, 4, s3")
    a(f"v_lshl_add_u32 v{VWO}, v{VG}, 15, v{T}")
    a(f"v_and_b32 v{T}, 1, v{VG}")
    a(f"v_lshlrev_b32 v{T}, 4, v{T}")
    a(f"v_lshl_add_u32 v{T}, v{VM_}, 5, v{T}")
    a(f"s_lshl_b32 s3, s{sW}, 9")
    a(f"v_add_u32 v{VL1}, s3, v{T}")
    a(f"v_lshlrev_b32 v{T}, 5, v{VM_}")
    vm.wait("x")
    a(f"v_lshl_or_b32 v{X}, v{X}, 16, v{X}")
    a(f"v_lshl_or_b32 v{X+1}, v{X+1}, 16, v{X+1}")
    st.mark()

    def vpat(src, i, data, first, bc):
        for r in range(4):
            a(f"v_and_b32_dpp v{bc+r}, v{src}, v{MASK+r} {dpp(f'row_newbcast:{i}')}")
        c = "0" if first else vr(ACC, 4)
        a(f"v_mfma_f32_16x16x32_bf16 {vr(ACC,4)}, {vr(bc,4)}, {data}, {c}")

    def woload(j):
        vm.issue("wo", f"buffer_load_dwordx4 {ar(4*j,4)}, v{VWO}, s[{rWO}:{rWO+3}], s42 offen offset:{(j%4)*1024}{WN}")
        if j % 4 == 3 and j < 31:
            a("s_add_u32 s42, s42, 0x1000")

    a("s_mov_b32 s42, 0")
    for i in range(32):
        vm.wait(f"wq{i}")
        vpat(X + i // 16, i % 16, ar(4 * i, 4), i == 0, BC + 4 * (i & 1))
        if i >= 1:
            woload(i - 1)
    lg.issue("w", f"ds_write_b128 v{VL1}, {vr(ACC,4)}")
    woload(31)
    lg.drain()
    a("s_barrier")
    for w in range(4):
        lg.issue(f"q{w}", f"ds_read_b128 {vr(32+8*w,4)}, v{T} offset:{512*w}")
        lg.issue(f"q{w}", f"ds_read_b128 {vr(36+8*w,4)}, v{T} offset:{512*w+16}")
    a(f"v_mov_b32 v{MRUN}, {NEGINF}")
    a(f"v_mov_b32 v{LRUN}, 0")
    for r in range(4):
        a(f"v_mov_b32 v{ACC+r}, 0")
    a(f"s_mov_b32 s{sC}, 0")
    a(f"s_mov_b32 s{sCN}, 0x10000")
    a(f"s_mov_b32 s{sIT}, 0")
    lg.wait("q1")
    for k in range(0, 8, 2):
        a(f"v_pk_add_f32 {vr(32+k,2)}, {vr(32+k,2)}, {vr(40+k,2)}")
    lg.wait("q3")
    for k in range(0, 8, 2):
        a(f"v_pk_add_f32 {vr(48+k,2)}, {vr(48+k,2)}, {vr(56+k,2)}")
    for k in range(0, 8, 2):
        a(f"v_pk_add_f32 {vr(32+k,2)}, {vr(32+k,2)}, {vr(48+k,2)}")
    for k in range(4):
        a(f"v_cvt_pk_bf16_f32 v{Q+k}, v{32+2*k}, v{33+2*k}")
    a(f"v_lshl_add_u32 v{VL3}, v{VG}, 5, v{VM_}")
    a(f"v_lshlrev_b32 v{VL3}, 2, v{VL3}")
    a(f"s_lshl_b32 s3, s{sUNIT}, 11")
    a(f"s_add_u32 s3, s3, {WS_APART}")
    a(f"v_add_u32 v{VST}, s3, v{VL1}")
    st.mark()

    def qk(first):
        done = []
        for i in range(16):
            vm.wait(f"K{i}")
            if i + D < 16:
                if not first:
                    kload(i + D, f"s{sC}")
            k = RING + 4 * i
            a(f"v_dot2_f32_bf16 v{S[i]}, v{k}, v{Q}, 0")
            for r in range(1, 4):
                a(f"v_dot2_f32_bf16 v{S[i]}, v{k+r}, v{Q+r}, v{S[i]}")
            if i + D >= 16:
                vload(i + D - 16, f"s{sC}")
            if i >= 9:
                tr_step1(a, S, i - 9)
                done.append(i - 9)
        return done

    done = qk(True)
    entry = [t for t in vm.p if t != "wo"]
    vm.p = list(entry)
    a.label("L_A_loop")
    transpose_reduce(a, S, T, sM1, sM0, done)
    s0 = S[0]
    bf16r(a, s0)
    a(f"v_mul_f32 v{s0}, {SCALE}, v{s0}")
    bf16r(a, s0)
    a(f"v_mul_f32 v{s0}, {LOG2E}, v{s0}")
    a(f"v_max_f32 v{T2}, v{s0}, v{MRUN}")
    wave_reduce(a, "v_max_f32", T2, T3)
    a(f"v_sub_f32 v{T3}, v{MRUN}, v{T2}")
    a(f"v_sub_f32 v{T4}, v{s0}, v{T2}")
    a(f"v_exp_f32 v{T3}, v{T3}")
    a(f"v_exp_f32 v{T4}, v{T4}")
    a(f"v_mov_b32 v{MRUN}, v{T2}")
    a(f"s_cmp_eq_u32 s{sIT}, 7")
    a(f"s_cselect_b32 s{rK+2}, 0, 0x80000")
    a(f"v_cvt_pk_bf16_f32 v{PP}, v{T4}, v{T4}")
    a(f"v_fma_f32 v{LRUN}, v{LRUN}, v{T3}, v{T4}")
    for r in range(4):
        a(f"v_mul_f32 v{ACC+r}, v{ACC+r}, v{T3}")
    for i in range(16):
        bc = BC + 4 * (i & 1)
        for r in range(4):
            a(f"v_and_b32_dpp v{bc+r}, v{PP}, v{MASK+r} {dpp(f'row_newbcast:{i}')}")
        vm.wait(f"V{i}")
        if i + D < 16:
            vload(i + D, f"s{sC}")
        a(f"v_mfma_f32_16x16x32_bf16 {vr(ACC,4)}, {vr(bc,4)}, {vr(RING+4*i,4)}, {vr(ACC,4)}")
        if i + D >= 16:
            kload(i + D - 16, f"s{sCN}")
    a("s_cbranch_scc1 L_A_done")
    a(f"s_mov_b32 s{sC}, s{sCN}")
    a(f"s_add_u32 s{sCN}, s{sCN}, 0x10000")
    a(f"s_add_u32 s{sIT}, s{sIT}, 1")
    done2 = qk(False)
    assert done2 == done and vm.p == entry, (vm.p, entry)
    a("s_branch L_A_loop")
    a.label("L_A_done")
    st.mark()
    lg.issue("w", f"ds_write_b128 v{VL1}, {vr(ACC,4)} offset:2048")
    wave_reduce(a, "v_add_f32", LRUN, T3)
    a(f"s_lshl_b32 s3, s{sW}, 3")
    a(f"v_mov_b32 v{T}, s3")
    lg.issue("w", f"ds_write_b64 v{T}, {vr(MRUN,2)} offset:4096")
    lg.drain()
    a("s_barrier")
    a(f"v_mov_b32 v{T}, 0")
    lg.issue("ml", f"ds_read_b128 {vr(32,4)}, v{T} offset:4096")
    lg.issue("ml", f"ds_read_b128 {vr(36,4)}, v{T} offset:4112")
    a(f"v_add_u32 v{VL3}, 2048, v{VL3}")
    for w in range(4):
        if w == 2:
            a(f"v_add_u32 v{VL3}, 1024, v{VL3}")
        o = (w & 1) * 128
        lg.issue("o", f"ds_read2_b32 {vr(40+2*w,2)}, v{VL3} offset0:{o} offset1:{o+16}")
    lg.wait("ml")
    a(f"v_max3_f32 v{T2}, v32, v34, v36")
    a(f"v_max_f32 v{T2}, v{T2}, v38")
    for w in range(4):
        a(f"v_sub_f32 v{32+2*w}, v{32+2*w}, v{T2}")
    for w in range(4):
        a(f"v_exp_f32 v{32+2*w}, v{32+2*w}")
    a(f"v_mul_f32 v{T3}, v32, v33")
    for w in range(1, 4):
        a(f"v_fma_f32 v{T3}, v{32+2*w}, v{33+2*w}, v{T3}")
    lg.wait("o")
    a(f"v_mul_f32 v{X}, v40, v32")
    a(f"v_mul_f32 v{X+1}, v41, v32")
    for w in range(1, 4):
        a(f"v_fma_f32 v{X}, v{40+2*w}, v{32+2*w}, v{X}")
        a(f"v_fma_f32 v{X+1}, v{41+2*w}, v{32+2*w}, v{X+1}")
    a(f"v_cvt_pk_bf16_f32 v{X}, v{X}, v{X}")
    a(f"v_cvt_pk_bf16_f32 v{X+1}, v{X+1}, v{X+1}")
    for i in range(32):
        vpat(X + i // 16, i % 16, ar(4 * i, 4), i == 0, BC + 4 * (i & 1))
    a(f"s_lshl_b32 s3, s{sUNIT}, 3")
    a(f"s_add_u32 s3, s3, {WS_AML}")
    a(f"v_mov_b32 v{T}, s3")
    a("s_mov_b32 exec_hi, 0")
    a(f"global_store_dwordx4 v{VST}, {vr(ACC,4)}, s[{sWS}:{sWS+1}]")
    a(f"s_cmp_lg_u32 s{sW}, 0")
    a("s_cbranch_scc1 L_A_end")
    a("s_mov_b64 exec, 1")
    a(f"global_store_dwordx2 v{T}, {vr(T2,2)}, s[{sWS}:{sWS+1}]")
    a.label("L_A_end")
    if st.on:
        a("s_waitcnt vmcnt(0)")
    st.mark()
    st.dump(sWS, sW)
    a("s_endpgm")


def poll(a, name, vaddr, vt, sdbg, off, target, sW, sT):
    a(f"s_cmp_lg_u32 s{sW}, 0")
    a(f"s_cbranch_scc1 {name}_done")
    a(f"s_mov_b32 s{sT}, 0")
    a.label(f"{name}_loop")
    a(f"global_load_dword v{vt}, v{vaddr}, s[{sdbg}:{sdbg+1}] offset:{off} sc1")
    a("s_waitcnt vmcnt(0)")
    a(f"v_readfirstlane_b32 s3, v{vt}")
    a(f"s_cmp_ge_u32 s3, {target}")
    a(f"s_cbranch_scc1 {name}_done")
    a("s_sleep 4")
    a(f"s_add_u32 s{sT}, s{sT}, 1")
    a(f"s_cmp_lt_u32 s{sT}, 0x8000")
    a(f"s_cbranch_scc1 {name}_loop")
    a.label(f"{name}_done")
    a("s_barrier")


def signal(a, name, vzero, vt, sdbg, off, sW):
    a("s_waitcnt vmcnt(0)")
    a("s_barrier")
    a(f"s_cmp_lg_u32 s{sW}, 0")
    a(f"s_cbranch_scc1 {name}_skip")
    a(f"v_mov_b32 v{vt}, 1")
    a("s_mov_b64 exec, 1")
    a(f"global_atomic_add v{vzero}, v{vt}, s[{sdbg}:{sdbg+1}] offset:{off} sc1")
    a("s_mov_b64 exec, -1")
    a.label(f"{name}_skip")


def gen_B(a, P):
    WN = " nt" if P["w_nt"] else ""
    vm = Cnt(a, "vmcnt", 63)
    lg = Cnt(a, "lgkmcnt", 15)
    st = Stamps(a, P["stamps"], 64)
    sX, sCK, sWQ, sWUK, sWUV, sWO, sDBG, sWS = 4, 8, 10, 12, 14, 16, 20, 22
    rA, rB, rC = 24, 28, 32
    sW, sH, sHALF, sU, sT, sT2, sOFF, sIT, sTO = 36, 37, 38, 39, 40, 41, 42, 43, 48
    sM1, sM0 = "s[44:45]", "s[46:47]"
    VL, VM_, VG, VZ = 1, 2, 3, 4
    SEL, XP, BC, ACC4 = 8, 12, 16, 24
    T, T2, T3, T4 = 28, 29, 30, 31
    VCK, VSW, VSR, VTR, VXW = 5, 6, 7, 14, 15
    st.mark()
    a("s_load_dwordx2 s[4:5], s[0:1], 0")
    a("s_load_dwordx8 s[8:15], s[0:1], 48")
    a("s_load_dwordx2 s[16:17], s[0:1], 80")
    a("s_load_dwordx4 s[20:23], s[0:1], 104")
    a(f"s_and_b32 s{sT}, s2, 7")
    a(f"s_lshr_b32 s{sT2}, s2, 3")
    a(f"s_lshl_b32 s{sU}, s{sT}, 3")
    a(f"s_add_u32 s{sU}, s{sU}, s{sT2}")
    a(f"s_lshr_b32 s{sH}, s{sU}, 1")
    a(f"s_and_b32 s{sHALF}, s{sU}, 1")
    a("v_lshrrev_b32 v1, 6, v0")
    a(f"v_readfirstlane_b32 s{sW}, v1")
    a(f"v_and_b32 v{VL}, 63, v0")
    a(f"v_and_b32 v{VM_}, 15, v0")
    a(f"v_bfe_u32 v{VG}, v0, 4, 2")
    a(f"v_mov_b32 v{VZ}, 0")
    a(f"v_lshl_add_u32 v{T}, v{VG}, 5, v{VM_}")
    a(f"s_lshl_b32 s3, s{sW}, 7")
    a(f"v_add_u32 v{T}, s3, v{T}")
    a(f"v_lshlrev_b32 v{T2}, 1, v{T}")
    a(f"v_sub_u32 v{T}, v{T}, v{VM_}")
    a(f"v_lshlrev_b32 v{T}, 13, v{T}")
    a(f"v_lshl_add_u32 v{T3}, v{VM_}, 4, v{T}")
    a(f"s_lshl_b32 s3, s{sHALF}, 2")
    a(f"s_add_u32 s3, s3, s{sW}")
    a(f"s_lshl_b32 s3, s3, 6")
    a(f"v_add_u32 v{T}, s3, v{VG}")
    a(f"v_lshlrev_b32 v{T}, 13, v{T}")
    a(f"v_lshl_add_u32 v{T4}, v{VM_}, 4, v{T}")
    a(f"s_lshl_b32 s3, s{sW}, 8")
    a(f"v_lshl_add_u32 v{T}, v{VM_}, 4, s3")
    a(f"v_lshl_add_u32 v{VCK}, v{VG}, 10, v{T}")
    a(f"s_lshl_b32 s{sT2}, s{sH}, 8")
    a(f"s_lshl_b32 s{sT}, s{sU}, 18")
    a(f"s_mov_b32 s{sOFF}, 0")
    a("s_waitcnt lgkmcnt(0)")
    vm.issue("x", f"global_load_ushort v{XP}, v{T2}, s[{sX}:{sX+1}]")
    vm.issue("x", f"global_load_ushort v{BC}, v{T2}, s[{sX}:{sX+1}] offset:1024")
    vm.issue("x", f"global_load_ushort v{XP+1}, v{T2}, s[{sX}:{sX+1}] offset:32")
    vm.issue("x", f"global_load_ushort v{BC+1}, v{T2}, s[{sX}:{sX+1}] offset:1056")
    WSZ = 0x400000 - 0x2000 + 256
    srd(a, rA, sWQ, f"s{sT2}", WSZ)
    for i in range(32):
        vm.issue(f"wq{i}", f"buffer_load_dwordx4 {ar(4*i,4)}, v{T3}, s[{rA}:{rA+3}], s{sOFF} offen{WN}")
        if i < 31:
            a(f"s_add_u32 s{sOFF}, s{sOFF}, 0x2000")
    srd(a, rB, sWUK, f"s{sT2}", WSZ)
    a(f"s_mov_b32 s{sOFF}, 0")
    UK = 64
    for i in range(16):
        vm.issue(f"uk{i}", f"buffer_load_dwordx4 {vr(UK+4*i,4)}, v{T4}, s[{rB}:{rB+3}], s{sOFF} offen nt")
        if i < 15:
            a(f"s_add_u32 s{sOFF}, s{sOFF}, 0x8000")
    srd(a, rC, sCK, f"s{sT}", 0x40000)
    a(f"v_mov_b32 v{T}, 0x0100")
    a(f"v_mov_b32 v{T2}, 0x0302")
    a(f"v_cmp_gt_u32 vcc, 8, v{VM_}")
    a(f"v_cndmask_b32 v{T}, v{T2}, v{T}, vcc")
    a(f"v_lshlrev_b32 v{T2}, 16, v{T}")
    a(f"v_or_b32 v{T2}, 0x0c0c, v{T2}")
    a(f"v_or_b32 v{T}, 0x0c0c0000, v{T}")
    a(f"v_and_b32 v{T3}, 1, v{VM_}")
    a(f"v_cmp_eq_u32 vcc, 1, v{T3}")
    a(f"v_cndmask_b32 v{T}, v{T}, v{T2}, vcc")
    a(f"v_bfe_u32 v{T2}, v{VM_}, 1, 2")
    a(f"v_mov_b32 v{T3}, 0x0c0c0c0c")
    for r in range(4):
        a(f"v_cmp_eq_u32 vcc, {r}, v{T2}")
        a(f"v_cndmask_b32 v{SEL+r}, v{T3}, v{T}, vcc")
    a("s_mov_b32 s44, 0xcccccccc")
    a("s_mov_b32 s45, 0xcccccccc")
    a("s_mov_b32 s46, 0xaaaaaaaa")
    a("s_mov_b32 s47, 0xaaaaaaaa")
    a(f"v_lshrrev_b32 v{T}, 1, v{VG}")
    a(f"v_lshlrev_b32 v{T}, 9, v{T}")
    a(f"v_lshl_add_u32 v{T}, v{VM_}, 5, v{T}")
    a(f"v_and_b32 v{T2}, 1, v{VG}")
    a(f"v_lshl_add_u32 v{T}, v{T2}, 4, v{T}")
    a(f"s_lshl_b32 s3, s{sW}, 10")
    a(f"s_add_u32 s3, s3, {LDS_XCH}")
    a(f"v_add_u32 v{VXW}, s3, v{T}")
    vm.wait("x")
    a(f"v_lshl_or_b32 v{XP}, v{BC}, 16, v{XP}")
    a(f"v_lshl_or_b32 v{XP+1}, v{BC+1}, 16, v{XP+1}")

    def vpat2(src, i, data, first, bc, t):
        a(f"v_mov_b32_dpp v{t}, v{src} {dpp(f'row_newbcast:{i}')}")
        for r in range(4):
            a(f"v_perm_b32 v{bc+r}, v{t}, v{t}, v{SEL+r}")
        c = "0" if first else vr(ACC4, 4)
        a(f"v_mfma_f32_16x16x32_bf16 {vr(ACC4,4)}, {vr(bc,4)}, {data}, {c}")

    STG = [64, 96]

    def ckload(buf, i, soff):
        vm.issue(f"ck{buf}", f"buffer_load_dwordx4 {ar(STG[buf]+4*i,4)}, v{VCK}, s[{rC}:{rC+3}], {soff} offen nt")

    a(f"s_mov_b32 s{sTO}, 0")
    for i in range(32):
        vm.wait(f"wq{i}")
        vpat2(XP + i // 16, i % 16, ar(4 * i, 4), i == 0, BC + 4 * (i & 1), T + (i & 1))
        if i >= 17:
            j = i - 17
            ckload(j // 8, j % 8, f"s{sTO}")
            a(f"s_add_u32 s{sTO}, s{sTO}, 0x1000")
    lg.issue("w", f"ds_write_b128 v{VXW}, {vr(ACC4,4)}")
    ckload(1, 7, f"s{sTO}")
    a(f"s_add_u32 s{sTO}, s{sTO}, 0x1000")
    a(f"v_lshlrev_b32 v{T}, 5, v{VM_}")
    a(f"v_add_u32 v{T}, {LDS_XCH}, v{T}")
    lg.drain()
    a("s_barrier")
    QB = 16
    for b in range(2):
        for w in range(4):
            lg.issue(f"q{w}", f"ds_read_b128 {vr(32+8*w,4)}, v{T} offset:{1024*w+512*b}")
            lg.issue(f"q{w}", f"ds_read_b128 {vr(36+8*w,4)}, v{T} offset:{1024*w+512*b+16}")
        lg.wait("q1")
        for k in range(0, 8, 2):
            a(f"v_pk_add_f32 {vr(32+k,2)}, {vr(32+k,2)}, {vr(40+k,2)}")
        lg.wait("q3")
        for k in range(0, 8, 2):
            a(f"v_pk_add_f32 {vr(48+k,2)}, {vr(48+k,2)}, {vr(56+k,2)}")
        for k in range(0, 8, 2):
            a(f"v_pk_add_f32 {vr(32+k,2)}, {vr(32+k,2)}, {vr(48+k,2)}")
        for k in range(4):
            a(f"v_cvt_pk_bf16_f32 v{QB+4*b+k}, v{32+2*k}, v{33+2*k}")
    S0 = list(range(32, 48))
    S1 = list(range(48, 64))
    for i in range(16):
        vm.wait(f"uk{i}")
        for b, S in ((0, S0), (1, S1)):
            a(f"v_dot2_f32_bf16 v{S[i]}, v{UK+4*i}, v{QB+4*b}, 0")
            for r in range(1, 4):
                a(f"v_dot2_f32_bf16 v{S[i]}, v{UK+4*i+r}, v{QB+4*b+r}, v{S[i]}")
    transpose_reduce(a, S0, T, sM1, sM0)
    transpose_reduce(a, S1, T, sM1, sM0)
    a(f"v_cvt_pk_bf16_f32 v{T2}, v{S0[0]}, v{S1[0]}")
    a(f"s_lshl_b32 s3, s{sU}, 2")
    a(f"s_add_u32 s3, s3, s{sW}")
    a(f"s_lshl_b32 s3, s3, 6")
    a(f"v_lshl_add_u32 v{T}, v{VM_}, 2, v{VG}")
    a(f"v_add_lshl_u32 v{T}, v{T}, s3, 1")
    a(f"v_add_u32 v{T3}, 0x8000, v{T}")
    vm.issue("st", f"global_store_short v{T}, v{T2}, s[{sWS}:{sWS+1}] sc1")
    vm.issue("st", f"global_store_short_d16_hi v{T3}, v{T2}, s[{sWS}:{sWS+1}] sc1")
    st.mark()
    signal(a, "L_B_sig1", VZ, T, sDBG, 0, sW)
    vm.p = []
    AF, QF = 32, 0
    SR = 32
    XT = 48
    PF = 16
    MRUN, LRUN, ALPHA = 24, 25, 26
    ACC = 64
    a(f"v_mul_u32_u24 v{T}, {STG_STRIDE}, v{VG}")
    a(f"v_lshl_add_u32 v{T}, v{VM_}, 4, v{T}")
    a(f"s_mul_i32 s3, s{sW}, {STG_WAVE}")
    a(f"v_add_u32 v{VSW}, s3, v{T}")
    a(f"v_and_b32 v{T}, 31, v{VL}")
    a(f"v_mul_u32_u24 v{T}, {STG_STRIDE}, v{T}")
    a(f"v_lshrrev_b32 v{T2}, 5, v{VL}")
    a(f"v_lshl_add_u32 v{T}, v{T2}, 4, v{T}")
    a(f"v_add_u32 v{VSR}, s3, v{T}")
    a(f"v_lshrrev_b32 v{T}, 2, v{VM_}")
    a(f"v_lshl_add_u32 v{T}, v{T2}, 2, v{T}")
    a(f"v_mul_u32_u24 v{T}, {STG_STRIDE}, v{T}")
    a(f"v_and_b32 v{T3}, 1, v{VG}")
    a(f"v_lshl_add_u32 v{T}, v{T3}, 5, v{T}")
    a(f"v_and_b32 v{T3}, 3, v{VM_}")
    a(f"v_lshl_add_u32 v{T}, v{T3}, 3, v{T}")
    a(f"v_add_u32 v{VTR}, s3, v{T}")
    VXR, VXWR = 12, 13
    a(f"v_lshlrev_b32 v{VXR}, 4, v{VL}")
    a(f"v_add_u32 v{VXR}, {LDS_XCH}, v{VXR}")
    a(f"s_lshl_b32 s3, s{sW}, 12")
    a(f"v_add_u32 v{VXWR}, s3, v{VXR}")
    a(f"v_and_b32 v{T}, 31, v{VL}")
    a(f"v_lshlrev_b32 v{T}, 10, v{T}")
    a(f"v_lshl_add_u32 v{T}, v{T2}, 4, v{T}")
    a(f"s_lshr_b32 s{sT}, s{sU}, 5")
    a(f"s_lshl_b32 s{sT}, s{sT}, 15")
    a(f"s_lshl_b32 s3, s{sW}, 8")
    a(f"s_add_u32 s3, s3, s{sT}")
    a(f"v_add_u32 v{T4}, s3, v{T}")
    for r in range(64):
        a(f"v_mov_b32 v{ACC+r}, 0")
    a(f"v_mov_b32 v{MRUN}, {NEGINF}")
    a(f"v_mov_b32 v{LRUN}, 0")
    a(f"s_mov_b32 s{sIT}, 0")
    poll(a, "L_B_p1", VZ, T, sDBG, 0, 64, sW, sT)
    for s in range(8):
        vm.issue("qf", f"global_load_dwordx4 {ar(QF+4*s,4)}, v{T4}, s[{sWS}:{sWS+1}] offset:{32*s} sc1")
    vm.drain()
    st.mark()
    vm.p = ["ck0"] * 8 + ["ck1"] * 8
    entry = list(vm.p)
    a.label("L_B_loop")
    a(f"s_cmp_eq_u32 s{sIT}, 3")
    a(f"s_cselect_b32 s{rC+2}, 0, 0x40000")
    for p in range(2):
        vm.wait(f"ck{p}")
        for i in range(8):
            lg.issue("sw", f"ds_write_b128 v{VSW}, {ar(STG[p]+4*i,4)} offset:{i*4*STG_STRIDE}")
        for s in range(8):
            lg.issue(f"af{s}", f"ds_read_b128 {ar(AF+4*s,4)}, v{VSR} offset:{32*s}")
        lg.wait("sw")
        for i in range(8):
            ckload(p, i, f"s{sTO}")
            a(f"s_add_u32 s{sTO}, s{sTO}, 0x1000")
        for s in range(8):
            lg.wait(f"af{s}")
            c = "0" if s == 0 else vr(SR, 16)
            a(f"v_mfma_f32_32x32x16_bf16 {vr(SR,16)}, {ar(AF+4*s,4)}, {ar(QF+4*s,4)}, {c}")
        for q in range(4):
            lg.issue("xw", f"ds_write_b128 v{VXWR}, {vr(SR+4*q,4)} offset:{p*16384+q*1024}")
        lg.drain()
        a("s_barrier")
        for q in range(4):
            for w in range(4):
                dst = SR + 4 * q if w == 0 else XT + 4 * (w - 1) + 0
                lg.issue(f"x{w}", f"ds_read_b128 {vr(dst,4)}, v{VXR} offset:{p*16384+w*4096+q*1024}")
            lg.wait("x1")
            for k in (0, 2):
                a(f"v_pk_add_f32 {vr(SR+4*q+k,2)}, {vr(SR+4*q+k,2)}, {vr(XT+k,2)}")
            lg.wait("x3")
            for k in (0, 2):
                a(f"v_pk_add_f32 {vr(XT+4+k,2)}, {vr(XT+4+k,2)}, {vr(XT+8+k,2)}")
            for k in (0, 2):
                a(f"v_pk_add_f32 {vr(SR+4*q+k,2)}, {vr(SR+4*q+k,2)}, {vr(XT+4+k,2)}")
        for cb in range(4):
            for t in range(2):
                for sec in range(2):
                    lg.issue(f"tr{cb}{t}", f"ds_read_b64_tr_b16 {ar(AF+8*cb+4*t+2*sec,2)}, v{VTR} offset:{(16*t+8*sec)*STG_STRIDE+cb*64}")
        for rnd in range(2):
            for k in range(8):
                a(f"v_cvt_pk_bf16_f32 v{XT+k}, v{SR+2*k}, v{SR+2*k+1}")
            mul = SCALE if rnd == 0 else LOG2E
            for k in range(8):
                a(f"v_lshlrev_b32 v{SR+2*k}, 16, v{XT+k}")
                a(f"v_and_b32 v{SR+2*k+1}, 0xffff0000, v{XT+k}")
            for k in range(16):
                a(f"v_mul_f32 v{SR+k}, {mul}, v{SR+k}")
        a(f"v_max3_f32 v{T}, v{SR}, v{SR+1}, v{MRUN}")
        for k in range(2, 16, 2):
            a(f"v_max3_f32 v{T}, v{SR+k}, v{SR+k+1}, v{T}")
        a(f"v_mov_b32 v{T2}, v{T}")
        a(f"v_permlane32_swap_b32 v{T}, v{T2}")
        a(f"v_max_f32 v{T}, v{T}, v{T2}")
        a(f"v_sub_f32 v{ALPHA}, v{MRUN}, v{T}")
        a(f"v_exp_f32 v{ALPHA}, v{ALPHA}")
        a(f"v_mov_b32 v{MRUN}, v{T}")
        for k in range(16):
            a(f"v_sub_f32 v{SR+k}, v{SR+k}, v{T}")
        for k in range(16):
            a(f"v_exp_f32 v{SR+k}, v{SR+k}")
        a(f"v_mul_f32 v{LRUN}, v{LRUN}, v{ALPHA}")
        for k in range(8):
            a(f"v_cvt_pk_bf16_f32 v{PF+k}, v{SR+2*k}, v{SR+2*k+1}")
        for k in range(0, 64, 2):
            a(f"v_pk_mul_f32 {vr(ACC+k,2)}, {vr(ACC+k,2)}, {vr(ALPHA,2)} op_sel_hi:[1,0]")
        for k in range(0, 8, 2):
            a(f"v_pk_add_f32 {vr(SR+k,2)}, {vr(SR+k,2)}, {vr(SR+8+k,2)}")
        for k in range(0, 4, 2):
            a(f"v_pk_add_f32 {vr(SR+k,2)}, {vr(SR+k,2)}, {vr(SR+4+k,2)}")
        a(f"v_pk_add_f32 {vr(SR,2)}, {vr(SR,2)}, {vr(SR+2,2)}")
        a(f"v_add_f32 v{LRUN}, v{LRUN}, v{SR}")
        a(f"v_add_f32 v{LRUN}, v{LRUN}, v{SR+1}")
        for cb in range(4):
            for t in range(2):
                lg.wait(f"tr{cb}{t}")
                a(f"v_mfma_f32_32x32x16_bf16 {vr(ACC+16*cb,16)}, {ar(AF+8*cb+4*t,4)}, {vr(PF+4*t,4)}, {vr(ACC+16*cb,16)}")
    assert vm.p == entry and lg.p == []
    a(f"s_add_u32 s{sIT}, s{sIT}, 1")
    a(f"s_cmp_lt_u32 s{sIT}, 4")
    a("s_cbranch_scc1 L_B_loop")
    st.mark()
    a(f"v_mov_b32 v{T2}, v{LRUN}")
    a(f"v_permlane32_swap_b32 v{LRUN}, v{T2}")
    a(f"v_add_f32 v{LRUN}, v{LRUN}, v{T2}")
    a(f"v_lshrrev_b32 v{T2}, 5, v{VL}")
    a(f"v_lshlrev_b32 v{T2}, 3, v{T2}")
    a(f"v_sub_u32 v{T3}, v{VSR}, v{T2}")
    for cb in range(4):
        for q in range(4):
            r = ACC + 16 * cb + 4 * q
            d = SR + 2 * ((4 * cb + q) % 8)
            a(f"v_cvt_pk_bf16_f32 v{d}, v{r}, v{r+1}")
            a(f"v_cvt_pk_bf16_f32 v{d+1}, v{r+2}, v{r+3}")
            lg.issue("tw", f"ds_write_b64 v{T3}, {vr(d,2)} offset:{cb*64+q*16}")
    for i in range(8):
        lg.issue(f"tr{i}", f"ds_read_b128 {vr(ACC+4*i,4)}, v{VSW} offset:{i*4*STG_STRIDE}")
    a(f"s_lshl_b32 s{sT}, s{sU}, 15")
    a(f"s_add_u32 s{sT}, s{sT}, {WS_BPART}")
    srd(a, rC, sWS, f"s{sT}", 0x8000)
    a(f"v_and_b32 v{T}, 31, v{VL}")
    a(f"s_lshl_b32 s3, s{sU}, 8")
    a(f"s_add_u32 s3, s3, {WS_BML}")
    a(f"v_lshl_add_u32 v{T}, v{T}, 3, s3")
    vm.issue("st", f"global_store_dwordx2 v{T}, {vr(MRUN,2)}, s[{sWS}:{sWS+1}] sc1")
    a(f"s_mov_b32 s{sOFF}, 0")
    for i in range(8):
        lg.wait(f"tr{i}")
        vm.issue("st", f"buffer_store_dwordx4 {vr(ACC+4*i,4)}, v{VCK}, s[{rC}:{rC+3}], s{sOFF} offen sc1")
        if i < 7:
            a(f"s_add_u32 s{sOFF}, s{sOFF}, 0x1000")
    signal(a, "L_B_sig2", VZ, T, sDBG, 128, sW)
    vm.p = []
    st.mark()
    UV = 64
    a(f"s_lshl_b32 s{sT2}, s{sH}, 8")
    srd(a, rB, sWUV, f"s{sT2}", WSZ)
    a(f"s_lshl_b32 s3, s{sHALF}, 2")
    a(f"s_add_u32 s3, s3, s{sW}")
    a(f"s_lshl_b32 s3, s3, 6")
    a(f"v_lshl_add_u32 v{T}, v{VG}, 4, s3")
    a(f"v_lshlrev_b32 v{T}, 13, v{T}")
    a(f"v_lshl_add_u32 v{T}, v{VM_}, 4, v{T}")
    a(f"s_mov_b32 s{sOFF}, 0")
    for i in range(16):
        vm.issue(f"uv{i}", f"buffer_load_dwordx4 {vr(UV+4*i,4)}, v{T}, s[{rB}:{rB+3}], s{sOFF} offen nt")
        if i < 15:
            a(f"s_add_u32 s{sOFF}, s{sOFF}, 0x2000")
    a(f"s_lshl_b32 s{sT2}, s{sH}, 17")
    srd(a, rA, sWO, f"s{sT2}", 0x20000)
    a(f"s_lshl_b32 s3, s{sW}, 8")
    a(f"v_lshl_add_u32 v{T}, v{VM_}, 4, s3")
    a(f"v_lshl_add_u32 v{T}, v{VG}, 15, v{T}")
    a(f"s_mov_b32 s{sOFF}, 0")
    for j in range(32):
        vm.issue("wo", f"buffer_load_dwordx4 {ar(4*j,4)}, v{T}, s[{rA}:{rA+3}], s{sOFF} offen offset:{(j%4)*1024}{WN}")
        if j % 4 == 3 and j < 31:
            a(f"s_add_u32 s{sOFF}, s{sOFF}, 0x1000")
    a(f"s_lshl_b32 s{sT}, s{sW}, 19")
    a(f"s_lshl_b32 s3, s{sU}, 9")
    a(f"s_add_u32 s{sT}, s{sT}, s3")
    a(f"s_add_u32 s{sT}, s{sT}, {WS_BPART}")
    srd(a, rC, sWS, f"s{sT}", 0x80000)
    a(f"v_lshrrev_b32 v{T2}, 5, v{VL}")
    a(f"v_and_b32 v{T3}, 31, v{VL}")
    a(f"v_lshlrev_b32 v{VCK}, 15, v{T2}")
    a(f"v_lshl_add_u32 v{VCK}, v{T3}, 4, v{VCK}")
    a(f"s_lshr_b32 s3, s{sW}, 1")
    a(f"s_lshl_b32 s3, s3, 13")
    a(f"s_lshl_b32 s{sT}, s{sH}, 3")
    a(f"s_add_u32 s{sT}, s{sT}, {WS_BML}")
    a(f"s_add_u32 s3, s3, s{sT}")
    a(f"v_lshl_add_u32 v{VSW}, v{T3}, 8, s3")
    a(f"s_lshl_b32 s3, s{sW}, 12")
    a(f"s_add_u32 s3, s3, s{sT}")
    a(f"v_lshl_add_u32 v{VSR}, v{T2}, 8, s3")
    a(f"s_lshl_b32 s3, s{sW}, 11")
    a(f"s_add_u32 s3, s3, {LDS_XCH}")
    a(f"v_lshlrev_b32 v{VTR}, 10, v{T2}")
    a(f"v_lshl_add_u32 v{VTR}, v{T3}, 5, v{VTR}")
    a(f"v_add_u32 v{VTR}, s3, v{VTR}")
    poll(a, "L_B_p2", VZ, T, sDBG, 128, 64, sW, sT)
    st.mark()
    PR, RML, OML = 32, 16, 12
    vm.issue("oml", f"global_load_dwordx2 {vr(OML,2)}, v{VSW}, s[{sWS}:{sWS+1}] sc1")
    for i in range(6):
        vm.issue("rml", f"global_load_dwordx2 {vr(RML+2*i,2)}, v{VSR}, s[{sWS}:{sWS+1}] offset:{512*i} sc1")
    a(f"s_mov_b32 s{sOFF}, 0")
    vm.wait("uv15")
    for i in range(6, 8):
        vm.issue("rml", f"global_load_dwordx2 {vr(RML+2*i,2)}, v{VSR}, s[{sWS}:{sWS+1}] offset:{512*i} sc1")
    for i in range(8):
        vm.issue(f"pr{i}", f"buffer_load_dwordx4 {vr(PR+4*i,4)}, v{VCK}, s[{rC}:{rC+3}], s{sOFF} offen sc1")
        if i < 7:
            a(f"s_add_u32 s{sOFF}, s{sOFF}, 0x10000")
    vm.wait("oml")
    MM, TT = 6, 7
    a(f"v_mov_b32 v{MM}, v{OML}")
    for c in ("row_ror:8", "row_ror:4", "row_ror:2", "row_ror:1"):
        a(f"v_max_f32_dpp v{MM}, v{MM}, v{MM} {dpp(c)}")
    a(f"v_mov_b32 v{TT}, v{MM}")
    a(f"v_permlane16_swap_b32 v{MM}, v{TT}")
    a(f"v_max_f32 v{MM}, v{MM}, v{TT}")
    a(f"v_sub_f32 v{OML}, v{OML}, v{MM}")
    a(f"v_exp_f32 v{OML}, v{OML}")
    a(f"v_mul_f32 v{OML}, v{OML}, v{OML+1}")
    for c in ("row_ror:8", "row_ror:4", "row_ror:2", "row_ror:1"):
        a(f"v_add_f32_dpp v{OML}, v{OML}, v{OML} {dpp(c)}")
    a(f"v_mov_b32 v{TT}, v{OML}")
    a(f"v_permlane16_swap_b32 v{OML}, v{TT}")
    a(f"v_add_f32 v{OML}, v{OML}, v{TT}")
    a(f"v_rcp_f32 v{OML}, v{OML}")
    vm.wait("rml")
    for i in range(8):
        a(f"v_sub_f32 v{RML+2*i}, v{RML+2*i}, v{MM}")
    for i in range(8):
        a(f"v_exp_f32 v{RML+2*i}, v{RML+2*i}")
    for i in range(8):
        a(f"v_mul_f32 v{RML+2*i}, v{RML+2*i}, v{OML}")
    OA = [RML + 2 * k + 1 for k in range(8)]
    for i in range(8):
        vm.wait(f"pr{i}")
        for k in range(4):
            a(f"v_lshlrev_b32 v{MM}, 16, v{PR+4*i+k}")
            a(f"v_and_b32 v{TT}, 0xffff0000, v{PR+4*i+k}")
            if i == 0:
                a(f"v_mul_f32 v{OA[2*k]}, v{MM}, v{RML}")
                a(f"v_mul_f32 v{OA[2*k+1]}, v{TT}, v{RML}")
            else:
                a(f"v_fmac_f32 v{OA[2*k]}, v{MM}, v{RML+2*i}")
                a(f"v_fmac_f32 v{OA[2*k+1]}, v{TT}, v{RML+2*i}")
    for k in range(8):
        a(f"v_mov_b32 v{PR+k}, v{OA[k]}")
    lg.issue("w", f"ds_write_b128 v{VTR}, {vr(PR,4)}")
    lg.issue("w", f"ds_write_b128 v{VTR}, {vr(PR+4,4)} offset:16")
    a(f"v_lshl_add_u32 v{T}, v{VG}, 4, v{VM_}")
    a(f"s_lshl_b32 s3, s{sW}, 8")
    a(f"s_add_u32 s3, s3, {LDS_XCH}")
    a(f"v_lshl_add_u32 v{T}, v{T}, 2, s3")
    lg.drain()
    a("s_barrier")
    for k in range(4):
        lg.issue("r", f"ds_read2st64_b32 {vr(PR+2*k,2)}, v{T} offset0:{8*k} offset1:{8*k+4}")
    lg.drain()
    for b in range(2):
        a(f"v_pk_add_f32 {vr(PR+4*b,2)}, {vr(PR+4*b,2)}, {vr(PR+4*b+2,2)}")
        a(f"v_add_f32 v{PR+4*b}, v{PR+4*b}, v{PR+4*b+1}")
    a(f"v_cvt_pk_bf16_f32 v{XP}, v{PR}, v{PR+4}")
    for i in range(16):
        vpat2(XP, i, vr(UV + 4 * i, 4), i == 0, BC + 4 * (i & 1), T + (i & 1))
    lg.issue("w", f"ds_write_b128 v{VXW}, {vr(ACC4,4)} offset:8192")
    a(f"v_lshl_add_u32 v{T}, v{VG}, 5, v{VM_}")
    a(f"v_lshlrev_b32 v{T}, 2, v{T}")
    a(f"v_add_u32 v{T}, {LDS_XCH+8192}, v{T}")
    lg.drain()
    a("s_barrier")
    for w in range(4):
        for b in range(2):
            lg.issue("r", f"ds_read2_b32 {vr(PR+4*w+2*b,2)}, v{T} offset0:{128*b} offset1:{128*b+16}")
        if w < 3:
            a(f"v_add_u32 v{T}, 1024, v{T}")
    lg.drain()
    for k in (0, 2):
        a(f"v_pk_add_f32 {vr(PR+k,2)}, {vr(PR+k,2)}, {vr(PR+4+k,2)}")
        a(f"v_pk_add_f32 {vr(PR+8+k,2)}, {vr(PR+8+k,2)}, {vr(PR+12+k,2)}")
        a(f"v_pk_add_f32 {vr(PR+k,2)}, {vr(PR+k,2)}, {vr(PR+8+k,2)}")
    a(f"v_cvt_pk_bf16_f32 v{XP}, v{PR}, v{PR+2}")
    a(f"v_cvt_pk_bf16_f32 v{XP+1}, v{PR+1}, v{PR+3}")
    vm.wait("wo")
    for i in range(32):
        vpat2(XP + i // 16, i % 16, ar(4 * i, 4), i == 0, BC + 4 * (i & 1), T + (i & 1))
    a(f"v_lshrrev_b32 v{T3}, 1, v{VG}")
    a(f"v_lshlrev_b32 v{T3}, 11, v{T3}")
    a(f"v_lshl_add_u32 v{T3}, v{VM_}, 5, v{T3}")
    a(f"v_and_b32 v{T4}, 1, v{VG}")
    a(f"v_lshl_add_u32 v{T3}, v{T4}, 4, v{T3}")
    a(f"s_lshl_b32 s3, s{sU}, 12")
    a(f"s_lshl_b32 s{sT}, s{sW}, 9")
    a(f"s_add_u32 s3, s3, s{sT}")
    a(f"s_add_u32 s3, s3, {WS_BOUT}")
    a(f"v_add_u32 v{T3}, s3, v{T3}")
    a(f"global_store_dwordx4 v{T3}, {vr(ACC4,4)}, s[{sWS}:{sWS+1}]")
    if st.on:
        a("s_waitcnt vmcnt(0)")
    st.mark()
    st.dump(sWS, sW)
    a("s_endpgm")


def gen_final(a, P):
    vm = Cnt(a, "vmcnt", 63)
    lg = Cnt(a, "lgkmcnt", 15)
    sX, sGW, sOUT, sWS = 4, 6, 8, 12
    sW, sB, sCB, sT = 14, 15, 16, 17
    VA, VA2, VB, VB2, VML, VX, T, T2, VL = 1, 2, 3, 4, 5, 6, 7, 8, 9
    ML, AP, BP, XW = 12, 20, 36, 44
    a("s_cmp_ge_u32 s2, 32")
    a("s_cbranch_scc1 L_F_end")
    a("s_load_dwordx2 s[4:5], s[0:1], 0")
    a("s_load_dwordx4 s[8:11], s[0:1], 96")
    a("s_load_dwordx2 s[6:7], s[0:1], 88")
    a("s_load_dwordx2 s[12:13], s[0:1], 112")
    a(f"s_lshr_b32 s{sB}, s2, 4")
    a(f"s_and_b32 s{sCB}, s2, 15")
    a(f"v_lshrrev_b32 v{T}, 3, v0")
    a(f"v_and_b32 v{T2}, 7, v0")
    a(f"v_lshlrev_b32 v{T2}, 4, v{T2}")
    a(f"v_lshl_add_u32 v{T2}, v{T}, 13, v{T2}")
    a(f"s_lshl_b32 s3, s{sCB}, 7")
    a(f"s_lshl_b32 s{sT}, s{sB}, 18")
    a(f"s_add_u32 s{sT}, s{sT}, s3")
    a(f"s_add_u32 s{sT}, s{sT}, {WS_APART}")
    a(f"v_add_u32 v{VA}, s{sT}, v{T2}")
    a(f"v_add_u32 v{VA2}, 0x1000, v{VA}")
    a(f"s_lshl_b32 s{sT}, s{sB}, 11")
    a(f"s_add_u32 s{sT}, s{sT}, s3")
    a(f"s_add_u32 s{sT}, s{sT}, {WS_BOUT}")
    a(f"v_add_u32 v{VB}, s{sT}, v{T2}")
    a(f"v_add_u32 v{VB2}, 0x1000, v{VB}")
    a(f"s_lshl_b32 s{sT}, s{sB}, 10")
    a(f"s_add_u32 s{sT}, s{sT}, {WS_AML}")
    a(f"v_lshl_add_u32 v{VML}, v{T}, 5, s{sT}")
    a(f"v_lshlrev_b32 v{T}, 2, v0")
    a(f"s_lshl_b32 s{sT}, s{sB}, 10")
    a(f"v_add_u32 v{VX}, s{sT}, v{T}")
    a(f"v_lshrrev_b32 v{T2}, 6, v0")
    a(f"v_readfirstlane_b32 s{sW}, v{T2}")
    a(f"v_and_b32 v{VL}, 63, v0")
    a("s_waitcnt lgkmcnt(0)")
    ws = f"s[{sWS}:{sWS+1}]"
    vm.issue("ml", f"global_load_dwordx4 {vr(ML,4)}, v{VML}, {ws}")
    vm.issue("ml", f"global_load_dwordx4 {vr(ML+4,4)}, v{VML}, {ws} offset:16")
    vm.issue("x", f"global_load_dword v{XW}, v{VX}, s[{sX}:{sX+1}]")
    vm.issue("x", f"global_load_dword v{XW+1}, v{T}, s[{sGW}:{sGW+1}]")
    vm.issue("a0", f"global_load_dwordx4 {vr(AP,4)}, v{VA}, {ws}")
    vm.issue("a1", f"global_load_dwordx4 {vr(AP+4,4)}, v{VA}, {ws} offset:2048")
    vm.issue("a2", f"global_load_dwordx4 {vr(AP+8,4)}, v{VA2}, {ws}")
    vm.issue("a3", f"global_load_dwordx4 {vr(AP+12,4)}, v{VA2}, {ws} offset:2048")
    vm.issue("b", f"global_load_dwordx4 {vr(BP,4)}, v{VB}, {ws}")
    vm.issue("b", f"global_load_dwordx4 {vr(BP+4,4)}, v{VB2}, {ws}")
    vm.wait("ml")
    a(f"v_max3_f32 v{T}, v{ML}, v{ML+2}, v{ML+4}")
    a(f"v_max_f32 v{T}, v{T}, v{ML+6}")
    for sp in range(4):
        a(f"v_sub_f32 v{ML+2*sp}, v{ML+2*sp}, v{T}")
    for sp in range(4):
        a(f"v_exp_f32 v{ML+2*sp}, v{ML+2*sp}")
    a(f"v_mul_f32 v{T}, v{ML}, v{ML+1}")
    for sp in range(1, 4):
        a(f"v_fmac_f32 v{T}, v{ML+2*sp}, v{ML+2*sp+1}")
    a(f"v_rcp_f32 v{T}, v{T}")
    for sp in range(4):
        a(f"v_mul_f32 v{ML+2*sp}, v{ML+2*sp}, v{T}")
    G = 46
    vm.wait("x")
    a(f"v_lshlrev_b32 v{T}, 16, v{XW}")
    a(f"v_lshlrev_b32 v{T2}, 16, v{XW+1}")
    a(f"v_and_b32 v{XW}, 0xffff0000, v{XW}")
    a(f"v_and_b32 v{XW+1}, 0xffff0000, v{XW+1}")
    a(f"v_mul_f32 v{T}, v{T}, v{T2}")
    a(f"v_mul_f32 v{T2}, v{XW}, v{XW+1}")
    a(f"v_cvt_pk_bf16_f32 v{T}, v{T}, v{T2}")
    a(f"v_lshlrev_b32 v{T2}, 16, v{T}")
    a(f"v_and_b32 v{T}, 0xffff0000, v{T}")
    a(f"v_add_f32 v{G}, v{T}, v{T2}")
    wave_reduce(a, "v_add_f32", G, T)
    a(f"s_lshl_b32 s3, s{sW}, 2")
    a(f"v_mov_b32 v{T}, s3")
    lg.issue("w", f"ds_write_b32 v{T}, v{G} offset:2048")
    vm.wait("a0")
    for k in range(4):
        a(f"v_mul_f32 v{AP+k}, v{AP+k}, v{ML}")
    for sp in range(1, 4):
        vm.wait(f"a{sp}")
        for k in range(4):
            a(f"v_fmac_f32 v{AP+k}, v{AP+4*sp+k}, v{ML+2*sp}")
    vm.wait("b")
    for k in range(4):
        a(f"v_add_f32 v{AP+4+k}, v{BP+k}, v{BP+4+k}")
    V = [AP + k for k in range(8)]
    for k in range(8):
        a(f"v_add_f32_dpp v{V[k]}, v{V[k]}, v{V[k]} {dpp('row_ror:8')}")
    for k in range(0, 8, 2):
        a(f"v_permlane16_swap_b32 v{V[k]}, v{V[k+1]}")
    for k in range(0, 8, 2):
        a(f"v_add_f32 v{V[k]}, v{V[k]}, v{V[k+1]}")
    for k in range(0, 8, 4):
        a(f"v_permlane32_swap_b32 v{V[k]}, v{V[k+2]}")
    a(f"v_add_f32 v{V[0]}, v{V[0]}, v{V[2]}")
    a(f"v_add_f32 v{V[1]}, v{V[4]}, v{V[6]}")
    a(f"v_lshlrev_b32 v{T}, 3, v0")
    lg.issue("w", f"ds_write_b64 v{T}, {vr(V[0],2)}")
    lg.drain()
    a("s_barrier")
    a(f"s_cmp_lg_u32 s{sW}, 0")
    a("s_cbranch_scc1 L_F_end")
    for w in range(4):
        lg.issue("r", f"ds_read_b64 {vr(AP+2*w,2)}, v{T} offset:{512*w}")
    a(f"v_mov_b32 v{T2}, 0")
    lg.issue("r", f"ds_read_b128 {vr(BP,4)}, v{T2} offset:2048")
    a(f"v_and_b32 v{T}, 7, v0")
    a(f"v_lshrrev_b32 v{T2}, 4, v0")
    a(f"v_lshl_add_u32 v{T}, v{T}, 2, v{T2}")
    a(f"s_lshl_b32 s3, s2, 6")
    a(f"v_lshl_add_u32 v{VA}, v{T}, 1, s3")
    lg.drain()
    a(f"v_pk_add_f32 {vr(AP,2)}, {vr(AP,2)}, {vr(AP+2,2)}")
    a(f"v_pk_add_f32 {vr(AP+4,2)}, {vr(AP+4,2)}, {vr(AP+6,2)}")
    a(f"v_pk_add_f32 {vr(BP,2)}, {vr(BP,2)}, {vr(BP+2,2)}")
    a(f"v_pk_add_f32 {vr(AP,2)}, {vr(AP,2)}, {vr(AP+4,2)}")
    a(f"v_add_f32 v{G}, v{BP}, v{BP+1}")
    bf16r(a, G)
    a(f"v_mul_f32 v{G}, 0xbfb8aa3b, v{G}")
    a(f"v_exp_f32 v{G}, v{G}")
    a(f"v_add_f32 v{G}, 1.0, v{G}")
    a(f"v_rcp_f32 v{G}, v{G}")
    bf16r(a, AP)
    bf16r(a, AP + 1)
    bf16r(a, G)
    a(f"v_sub_f32 v{T}, 1.0, v{G}")
    a(f"v_mul_f32 v{AP}, v{AP}, v{G}")
    bf16r(a, T)
    bf16r(a, AP)
    a(f"v_mul_f32 v{AP+1}, v{AP+1}, v{T}")
    bf16r(a, AP + 1)
    a(f"v_add_f32 v{AP}, v{AP}, v{AP+1}")
    a(f"v_cvt_pk_bf16_f32 v{AP}, v{AP}, v{AP}")
    a("s_mov_b32 exec_lo, 0x00ff00ff")
    a("s_mov_b32 exec_hi, 0x00ff00ff")
    a(f"global_store_short v{VA}, v{AP}, s[{sOUT}:{sOUT+1}]")
    a.label("L_F_end")
    a("s_endpgm")


def kd(name, vg, acc):
    return f""".p2align 6
.amdhsa_kernel {name}
  .amdhsa_next_free_vgpr {vg}
  .amdhsa_next_free_sgpr 102
  .amdhsa_accum_offset {acc}
  .amdhsa_group_segment_fixed_size 0
  .amdhsa_kernarg_size 120
  .amdhsa_user_sgpr_count 2
  .amdhsa_user_sgpr_kernarg_segment_ptr 1
  .amdhsa_system_sgpr_workgroup_id_x 1
.end_amdhsa_kernel
"""


def build(P):
    a = Asm()
    a.raw(f"; @launch kernel={MAIN} grid=(320,1,1) block=(256,1,1) lds={LDS_TOTAL}")
    a.raw(f"; @launch kernel={FIN} grid=(32,1,1) block=(256,1,1) lds=4096")
    a.raw('.amdgcn_target "amdgcn-amd-amdhsa--gfx950"\n.text')
    a.raw(f".globl {MAIN}\n.p2align 8\n.type {MAIN},@function\n{MAIN}:")
    a("s_cmp_lt_u32 s2, 64")
    a("s_cbranch_scc1 L_B_entry")
    a("s_cmp_lt_u32 s2, 320")
    a("s_cbranch_scc1 L_A_entry")
    a("s_endpgm")
    a.label("L_A_entry")
    if P.get("skipA"):
        a("s_endpgm")
    gen_A(a, P)
    a.raw(".p2align 6")
    a.label("L_B_entry")
    if P.get("skipB"):
        a("s_endpgm")
    gen_B(a, P)
    a.raw(f".globl {FIN}\n.p2align 8\n.type {FIN},@function\n{FIN}:")
    a.hist = []
    gen_final(a, P)
    a.raw('.section .rodata,"a"')
    a.raw(kd(MAIN, 256, 128))
    a.raw(kd(FIN, 48, 48))
    return a.text()


DEFAULT = dict(D=4, w_nt=False, k_first=4, stamps=False)

if __name__ == "__main__":
    out = sys.argv[1]
    P = dict(DEFAULT)
    for kv in sys.argv[2:]:
        k, v = kv.split("=")
        P[k] = int(v)
    open(out, "w").write(build(P))
```

```python
import sys
sys.path.insert(0, "dev")
from asmlib import *
from gen import (Cnt, dpp, transpose_reduce, tr_step1, wave_reduce, bf16r, srd, LOG2E, SCALE, NEGINF,
                 WS_QABS, WS_BML, WS_AML, WS_BPART, WS_APART, WS_BOUT, WS_STAMP, STG_STRIDE, STG_WAVE)

NAME = "gated_mix__mha_block_cached__compressed_kv_cla__decode_kernel"
LDS_XCH = 8 * STG_WAVE
LDS_TOTAL = LDS_XCH + 65536
C1, C2, C3 = 0, 64, 128
NB, NA = 32, 224


class Stamps:
    def __init__(self, a, on, sbase):
        self.a, self.on, self.sbase, self.n = a, on, sbase, 0

    def mark(self):
        if self.on:
            assert self.n < 7
            self.a(f"s_memrealtime s[{self.sbase + 2*self.n}:{self.sbase + 2*self.n + 1}]")
            self.a("s_waitcnt lgkmcnt(0)")
            self.n += 1

    def dump(self, wsreg, wave_s):
        if not self.on:
            return
        a = self.a
        a("s_getreg_b32 s3, hwreg(HW_REG_HW_ID)")
        a(f"s_mov_b32 s{self.sbase+14}, s3")
        a("s_getreg_b32 s3, hwreg(HW_REG_XCC_ID)")
        a(f"s_mov_b32 s{self.sbase+15}, s3")
        a("s_mov_b64 exec, -1")
        for i in range(16):
            a(f"v_mov_b32 v{i+4}, s{self.sbase+i}")
        a("s_lshl_b32 s3, s2, 3")
        a(f"s_add_u32 s3, s3, s{wave_s}")
        a("s_lshl_b32 s3, s3, 6")
        a(f"s_add_u32 s3, s3, {WS_STAMP}")
        a("v_mov_b32 v1, s3")
        a("s_mov_b64 exec, 1")
        for i in range(4):
            a(f"global_store_dwordx4 v1, v[{4+4*i}:{7+4*i}], s[{wsreg}:{wsreg+1}] offset:{16*i}")


def make_sel(a, SEL, VM_, T, T2, T3):
    a(f"v_mov_b32 v{T}, 0x0100")
    a(f"v_mov_b32 v{T2}, 0x0302")
    a(f"v_cmp_gt_u32 vcc, 8, v{VM_}")
    a(f"v_cndmask_b32 v{T}, v{T2}, v{T}, vcc")
    a(f"v_lshlrev_b32 v{T2}, 16, v{T}")
    a(f"v_or_b32 v{T2}, 0x0c0c, v{T2}")
    a(f"v_or_b32 v{T}, 0x0c0c0000, v{T}")
    a(f"v_and_b32 v{T3}, 1, v{VM_}")
    a(f"v_cmp_eq_u32 vcc, 1, v{T3}")
    a(f"v_cndmask_b32 v{T}, v{T}, v{T2}, vcc")
    a(f"v_bfe_u32 v{T2}, v{VM_}, 1, 2")
    a(f"v_mov_b32 v{T3}, 0x0c0c0c0c")
    for r in range(4):
        a(f"v_cmp_eq_u32 vcc, {r}, v{T2}")
        a(f"v_cndmask_b32 v{SEL+r}, v{T3}, v{T}, vcc")


def vpat2(a, SEL, acc, src, i, data, first, bc, t):
    a(f"v_mov_b32_dpp v{t}, v{src} {dpp(f'row_newbcast:{i}')}")
    for r in range(4):
        a(f"v_perm_b32 v{bc+r}, v{t}, v{t}, v{SEL+r}")
    c = "0" if first else vr(acc, 4)
    a(f"v_mfma_f32_16x16x32_bf16 {vr(acc,4)}, {vr(bc,4)}, {data}, {c}")


def poll(a, name, vaddr, vt, sdbg, off, target, sW, sT, sleep=4):
    a(f"s_cmp_lg_u32 s{sW}, 0")
    a(f"s_cbranch_scc1 {name}_done")
    a(f"s_mov_b32 s{sT}, 0")
    a.label(f"{name}_loop")
    a(f"global_load_dword v{vt}, v{vaddr}, s[{sdbg}:{sdbg+1}] offset:{off} sc1")
    a("s_waitcnt vmcnt(0)")
    a(f"v_readfirstlane_b32 s3, v{vt}")
    a(f"s_cmp_ge_u32 s3, {target}")
    a(f"s_cbranch_scc1 {name}_done")
    a(f"s_sleep {sleep}")
    a(f"s_add_u32 s{sT}, s{sT}, 1")
    a(f"s_cmp_lt_u32 s{sT}, 0x8000")
    a(f"s_cbranch_scc1 {name}_loop")
    a.label(f"{name}_done")
    a("s_barrier")


def signal(a, name, vzero, vt, sdbg, off, sW, wave, keep=0):
    a(f"s_waitcnt vmcnt({keep})")
    a("s_barrier")
    a(f"s_cmp_lg_u32 s{sW}, {wave}")
    a(f"s_cbranch_scc1 {name}_skip")
    a("s_mov_b64 exec, 1")
    a(f"v_mov_b32 v{vt}, 1")
    a(f"global_atomic_add v{vzero}, v{vt}, s[{sdbg}:{sdbg+1}] offset:{off} sc1")
    a("s_mov_b64 exec, -1")
    a.label(f"{name}_skip")


def gen_A(a, P):
    D, D0 = P["D"], P["D0"]
    WN = " nt" if P["w_nt"] else ""
    vm = Cnt(a, "vmcnt", 63)
    lg = Cnt(a, "lgkmcnt", 15)
    st = Stamps(a, P["stamps"], 64)
    VL1, VM_, VG, VO = 1, 2, 3, 4
    MASK, Q, BC, ACC = 8, 12, 16, 24
    MRUN, LRUN, PP, T = 28, 29, 30, 31
    S = list(range(32, 48))
    X, SEL, VW, T2, T3, T4, T5, VNI = 48, 52, 56, 58, 59, 60, 61, 57
    VL3, VST = 62, 63
    RING = 64
    sX, sK, sV, sWQ, sWO, sDBG, sWS = 4, 6, 8, 10, 12, 48, 50
    rK, rV, rW = 16, 20, 24
    sW, sH, sB, sJ7, sN, sWP, sROLE, sT, sT2, sU0, sOFF, sNM = 32, 33, 34, 35, 36, 37, 38, 39, 40, 41, 42, 43
    sM1, sM0, sMK = "s[44:45]", "s[46:47]", "s[52:53]"
    st.mark()
    a("s_load_dwordx8 s[4:11], s[0:1], 0")
    a("s_load_dwordx2 s[12:13], s[0:1], 32")
    a("s_load_dwordx4 s[48:51], s[0:1], 104")
    a("v_lshrrev_b32 v1, 6, v0")
    a(f"v_readfirstlane_b32 s{sW}, v1")
    a(f"s_sub_u32 s3, s2, {NB}")
    a(f"s_and_b32 s{sH}, s3, 7")
    a(f"s_lshl_b32 s{sH}, s{sH}, 2")
    a(f"s_lshr_b32 s3, s3, 3")
    a(f"s_mul_i32 s{sT}, s3, 37")
    a(f"s_lshr_b32 s{sT}, s{sT}, 8")
    a(f"s_add_u32 s{sH}, s{sH}, s{sT}")
    a(f"s_mul_i32 s{sT}, s{sT}, 7")
    a(f"s_sub_u32 s{sJ7}, s3, s{sT}")
    a(f"s_lshl_b32 s3, s{sJ7}, 3")
    a(f"s_add_u32 s3, s3, s{sW}")
    a(f"s_cmp_ge_u32 s3, 28")
    a(f"s_cselect_b32 s{sB}, 1, 0")
    a(f"s_cselect_b32 s{sT}, 28, 0")
    a(f"s_sub_u32 s3, s3, s{sT}")
    a(f"s_cmp_lt_u32 s3, 4")
    a(f"s_cselect_b32 s{sN}, 1, 0")
    a(f"s_add_u32 s{sN}, s{sN}, 73")
    a(f"s_min_u32 s{sT}, s3, 4")
    a(f"s_mul_i32 s3, s3, 73")
    a(f"s_add_u32 s3, s3, s{sT}")
    a(f"s_lshl_b32 s{sT}, s{sB}, 5")
    a(f"s_add_u32 s{sT}, s{sT}, s{sH}")
    a(f"s_lshl_b32 s{sT}, s{sT}, 11")
    a(f"s_add_u32 s{sT}, s{sT}, s3")
    a(f"s_lshl_b32 s{sT}, s{sT}, 10")
    a(f"s_lshl_b32 s{sT2}, s{sN}, 10")
    a(f"s_and_b32 s{sWP}, s{sW}, 3")
    a(f"s_lshr_b32 s{sROLE}, s{sW}, 2")
    a("v_and_b32 v1, 63, v0")
    a(f"v_and_b32 v{VM_}, 15, v0")
    a(f"v_bfe_u32 v{VG}, v0, 4, 2")
    a(f"v_lshlrev_b32 v{VO}, 4, v1")
    for k in range(1, 4):
        a(f"v_add_u32 v{VO+k}, {4096*k}, v{VO}")
    a(f"v_lshl_add_u32 v{T}, v{VG}, 5, v{VM_}")
    a(f"s_lshl_b32 s3, s{sWP}, 7")
    a(f"v_add_u32 v{T}, s3, v{T}")
    a(f"v_lshlrev_b32 v{T2}, 1, v{T}")
    a(f"v_sub_u32 v{T}, v{T}, v{VM_}")
    a(f"v_lshlrev_b32 v{T}, 13, v{T}")
    a(f"v_lshl_add_u32 v{VW}, v{VM_}, 4, v{T}")
    a(f"s_mov_b32 s{sOFF}, 0")
    a("s_waitcnt lgkmcnt(0)")
    srd(a, rK, sK, f"s{sT}", f"s{sT2}")
    srd(a, rV, sV, f"s{sT}", f"s{sT2}")

    NIT = 5
    nl = [16, 16, 16, 16, 10]
    seq = []
    for it in range(NIT):
        seq += [("K", it, i) for i in range(nl[it])]
        seq += [("V", it, i) for i in range(nl[it])]
    SCH = 54
    for it in range(1, NIT):
        a(f"s_mov_b32 s{SCH+it}, {it*16384}")

    def ld(p):
        kv, it, i = seq[p]
        r = rK if kv == "K" else rV
        so = "0" if it == 0 else f"s{SCH+it}"
        vm.issue(f"{kv}{it}_{i}", f"buffer_load_dwordx4 {vr(RING+4*i,4)}, v{VO + i//4}, s[{r}:{r+3}], {so} offen offset:{(i%4)*1024} nt")

    def common_setup():
        a(f"v_and_b32 v{T}, 1, v{VM_}")
        a(f"v_lshlrev_b32 v{T}, 4, v{T}")
        a(f"v_mov_b32 v{T3}, 0xffff")
        a(f"v_lshlrev_b32 v{T3}, v{T}, v{T3}")
        a(f"v_bfe_u32 v{T}, v{VM_}, 1, 2")
        for r in range(4):
            a(f"v_cmp_eq_u32 vcc, {r}, v{T}")
            a(f"v_cndmask_b32 v{MASK+r}, 0, v{T3}, vcc")
        make_sel(a, SEL, VM_, T, T3, T4)
        a("s_mov_b32 s44, 0xcccccccc")
        a("s_mov_b32 s45, 0xcccccccc")
        a("s_mov_b32 s46, 0xaaaaaaaa")
        a("s_mov_b32 s47, 0xaaaaaaaa")
        a(f"v_mov_b32 v{VNI}, {NEGINF}")
        a(f"v_and_b32 v{T}, 1, v{VG}")
        a(f"v_lshlrev_b32 v{T}, 4, v{T}")
        a(f"v_lshl_add_u32 v{VL1}, v{VM_}, 5, v{T}")

    a(f"s_cmp_lg_u32 s{sROLE}, 0")
    a("s_cbranch_scc1 L_A_role1")
    vm.issue("x", f"global_load_ushort v{X}, v{T2}, s[{sX}:{sX+1}]")
    vm.issue("x", f"global_load_ushort v{X+2}, v{T2}, s[{sX}:{sX+1}] offset:1024")
    vm.issue("x", f"global_load_ushort v{X+1}, v{T2}, s[{sX}:{sX+1}] offset:32")
    vm.issue("x", f"global_load_ushort v{X+3}, v{T2}, s[{sX}:{sX+1}] offset:1056")
    a(f"s_lshl_b32 s3, s{sH}, 8")
    srd(a, rW, sWQ, "s3", 0x400000 - 0x2000 + 256)
    kf = P["k_first"]
    for p in range(kf):
        ld(p)
    for i in range(32):
        vm.issue(f"wq{i}", f"buffer_load_dwordx4 {ar(4*i,4)}, v{VW}, s[{rW}:{rW+3}], s{sOFF} offen{WN}")
        if i < 31:
            a(f"s_add_u32 s{sOFF}, s{sOFF}, 0x2000")
    for p in range(kf, 16):
        ld(p)
    common_setup()
    vm.wait("x")
    a(f"v_lshl_or_b32 v{X}, v{X+2}, 16, v{X}")
    a(f"v_lshl_or_b32 v{X+1}, v{X+3}, 16, v{X+1}")
    st.mark()
    for i in range(32):
        vm.wait(f"wq{i}")
        vpat2(a, SEL, ACC, X + i // 16, i % 16, ar(4 * i, 4), i == 0, BC + 4 * (i & 1), T2 + (i & 1))
    a(f"v_lshrrev_b32 v{T}, 1, v{VG}")
    a(f"v_lshl_add_u32 v{T}, v{T}, 9, v{VL1}")
    a(f"s_lshl_b32 s3, s{sWP}, 10")
    a(f"v_add_u32 v{T}, s3, v{T}")
    a(f"ds_write_b128 v{T}, {vr(ACC,4)}")
    a(f"s_mov_b32 s{rW+2}, 0")
    a("s_waitcnt lgkmcnt(0)")
    a("s_branch L_A_join")
    a.label("L_A_role1")
    vm.p = []
    for p in range(16):
        ld(p)
    common_setup()
    if st.on:
        st.n -= 1
        st.mark()
    a(f"s_lshl_b32 s3, s{sH}, 17")
    srd(a, rW, sWO, "s3", 0x20000)
    a.label("L_A_join")
    a(f"s_lshl_b32 s3, s{sWP}, 8")
    a(f"v_lshl_add_u32 v{T}, v{VM_}, 4, s3")
    a(f"v_lshl_add_u32 v{VW}, v{VG}, 15, v{T}")
    a(f"s_lshl_b32 s3, s{sB}, 9")
    a(f"v_lshl_add_u32 v{T}, v{VM_}, 5, s3")
    a(f"s_mov_b32 s{sOFF}, 0")
    a("s_barrier")
    for w in range(4):
        lg.issue(f"q{w}", f"ds_read_b128 {vr(32+4*w,4)}, v{T} offset:{1024*w}")
    for w in range(4):
        lg.issue(f"r{w}", f"ds_read_b128 {vr([16,20,24,48][w],4)}, v{T} offset:{1024*w+16}")
    lg.wait("q3")
    for k in (0, 2):
        a(f"v_pk_add_f32 {vr(32+k,2)}, {vr(32+k,2)}, {vr(36+k,2)}")
        a(f"v_pk_add_f32 {vr(40+k,2)}, {vr(40+k,2)}, {vr(44+k,2)}")
    for k in (0, 2):
        a(f"v_pk_add_f32 {vr(32+k,2)}, {vr(32+k,2)}, {vr(40+k,2)}")
    lg.wait("r3")
    for k in (0, 2):
        a(f"v_pk_add_f32 {vr(16+k,2)}, {vr(16+k,2)}, {vr(20+k,2)}")
        a(f"v_pk_add_f32 {vr(24+k,2)}, {vr(24+k,2)}, {vr(48+k,2)}")
    for k in (0, 2):
        a(f"v_pk_add_f32 {vr(16+k,2)}, {vr(16+k,2)}, {vr(24+k,2)}")
    a(f"v_cvt_pk_bf16_f32 v{Q}, v32, v33")
    a(f"v_cvt_pk_bf16_f32 v{Q+1}, v34, v35")
    a(f"v_cvt_pk_bf16_f32 v{Q+2}, v16, v17")
    a(f"v_cvt_pk_bf16_f32 v{Q+3}, v18, v19")
    a(f"v_mov_b32 v{MRUN}, {NEGINF}")
    a(f"v_mov_b32 v{LRUN}, 0")
    for r in range(4):
        a(f"v_mov_b32 v{ACC+r}, 0")
    st.mark()

    state = dict(nxt=16, wo=0)

    def woload():
        j = state["wo"]
        vm.issue("wo", f"buffer_load_dwordx4 {ar(4*j,4)}, v{VW}, s[{rW}:{rW+3}], s{sOFF} offen offset:{(j%4)*1024}{WN}")
        if j % 4 == 3 and j < 31:
            a(f"s_add_u32 s{sOFF}, s{sOFF}, 0x1000")
        state["wo"] += 1

    def slot_free(q, p, after):
        kv, it, i = seq[q]
        prev = max([r for r in range(q) if seq[r][2] == i], default=-1)
        return prev < p or (prev == p and after)

    def advance(p, after):
        d = D0 if p < 16 else D
        while state["nxt"] < len(seq) and state["nxt"] <= p + d and slot_free(state["nxt"], p, after):
            ld(state["nxt"])
            state["nxt"] += 1
            if state["nxt"] >= P["wo_start"] and state["nxt"] % P["wo_every"] == 0 and state["wo"] < 32:
                woload()

    p = 0
    for it in range(NIT):
        n = nl[it]
        done = []
        if n < 16:
            for i in range(n, 16):
                a(f"v_mov_b32 v{S[i]}, 0")
        for i in range(n):
            vm.wait(f"K{it}_{i}")
            advance(p, False)
            k = RING + 4 * i
            a(f"v_dot2_f32_bf16 v{S[i]}, v{k}, v{Q}, 0")
            for r in range(1, 4):
                a(f"v_dot2_f32_bf16 v{S[i]}, v{k+r}, v{Q+r}, v{S[i]}")
            advance(p, True)
            if i >= 9 and n == 16:
                tr_step1(a, S, i - 9)
                done.append(i - 9)
            p += 1
        transpose_reduce(a, S, T, sM1, sM0, done)
        s0 = S[0]
        bf16r(a, s0)
        a(f"v_mul_f32 v{s0}, {SCALE}, v{s0}")
        bf16r(a, s0)
        a(f"v_mul_f32 v{s0}, {LOG2E}, v{s0}")
        if n < 16:
            a(f"s_sub_u32 s3, s{sN}, {16*it}")
            a(f"v_cmp_gt_u32 vcc, s3, v{VM_}")
            a(f"v_cndmask_b32 v{s0}, v{VNI}, v{s0}, vcc")
        a(f"v_max_f32 v{T2}, v{s0}, v{MRUN}")
        wave_reduce(a, "v_max_f32", T2, T3)
        a(f"v_sub_f32 v{T3}, v{MRUN}, v{T2}")
        a(f"v_sub_f32 v{T4}, v{s0}, v{T2}")
        a(f"v_exp_f32 v{T3}, v{T3}")
        a(f"v_exp_f32 v{T4}, v{T4}")
        a(f"v_mov_b32 v{MRUN}, v{T2}")
        a(f"v_cvt_pk_bf16_f32 v{PP}, v{T4}, v{T4}")
        a(f"v_fma_f32 v{LRUN}, v{LRUN}, v{T3}, v{T4}")
        for r in range(4):
            a(f"v_mul_f32 v{ACC+r}, v{ACC+r}, v{T3}")
        for i in range(n):
            bc = BC + 4 * (i & 1)
            for r in range(4):
                a(f"v_and_b32_dpp v{bc+r}, v{PP}, v{MASK+r} {dpp(f'row_newbcast:{i}')}")
            vm.wait(f"V{it}_{i}")
            advance(p, False)
            a(f"v_mfma_f32_16x16x32_bf16 {vr(ACC,4)}, {vr(bc,4)}, {vr(RING+4*i,4)}, {vr(ACC,4)}")
            advance(p, True)
            p += 1
    assert state["wo"] == 32 and state["nxt"] == len(seq), state
    st.mark()
    a(f"s_lshl_b32 s3, s{sW}, 9")
    a(f"v_add_u32 v{T}, s3, v{VL1}")
    lg.issue("w", f"ds_write_b128 v{T}, {vr(ACC,4)} offset:4096")
    wave_reduce(a, "v_add_f32", LRUN, T3)
    a(f"s_lshl_b32 s3, s{sW}, 3")
    a(f"v_mov_b32 v{T}, s3")
    lg.issue("w", f"ds_write_b64 v{T}, {vr(MRUN,2)} offset:8192")
    lg.drain()
    a("s_barrier")
    a(f"s_cmp_eq_u32 s{sROLE}, 0")
    a("s_cbranch_scc1 L_A_end")
    a(f"v_mov_b32 v{T}, 0")
    ML = 64
    OV = 80
    for k in range(4):
        lg.issue("ml", f"ds_read_b128 {vr(ML+4*k,4)}, v{T} offset:{8192+16*k}")
    a(f"v_lshl_add_u32 v{VL3}, v{VG}, 5, v{VM_}")
    a(f"v_lshlrev_b32 v{VL3}, 2, v{VL3}")
    a(f"v_add_u32 v{T5}, 64, v{VL3}")
    for xx, ad in ((0, VL3), (1, T5)):
        for k in range(4):
            lg.issue("o", f"ds_read2st64_b32 {vr(OV+8*xx+2*k,2)}, v{ad} offset0:{16+4*k} offset1:{18+4*k}")
    a(f"s_cmp_eq_u32 s{sJ7}, 3")
    a("s_cselect_b32 s52, -1, 0")
    a("s_cselect_b32 s53, -1, 0")
    a(f"s_cselect_b32 s{sNM}, 0, 1.0")
    a(f"s_lshl_b32 s{sU0}, s{sH}, 2")
    a(f"s_add_u32 s{sT}, s{sU0}, 128")
    a(f"s_add_u32 s{sU0}, s{sU0}, s{sJ7}")
    a(f"s_cmp_gt_u32 s{sJ7}, 3")
    a(f"s_cselect_b32 s3, 125, 0")
    a(f"s_add_u32 s{sU0}, s{sU0}, s3")
    a(f"v_mov_b32 v{T}, s{sU0}")
    a(f"v_mov_b32 v{T2}, s{sT}")
    a(f"v_cmp_lt_u32 vcc, 1, v{VG}")
    a(f"v_cndmask_b32 v{T}, v{T}, v{T2}, vcc")
    a(f"s_lshl_b32 s3, s{sWP}, 9")
    a(f"s_add_u32 s3, s3, {WS_APART}")
    a(f"v_add_u32 v{VST}, s3, v{VL1}")
    a(f"v_lshl_add_u32 v{VST}, v{T}, 11, v{VST}")
    a(f"v_lshlrev_b32 v{T}, 3, v{T}")
    a(f"v_add_u32 v{VL3}, {WS_AML}, v{T}")
    lg.wait("ml")
    MA, MB, MALL, LA, LB = 32, 33, 34, 35, 36
    a(f"v_max3_f32 v{MA}, v{ML}, v{ML+2}, v{ML+4}")
    a(f"v_max_f32 v{MA}, v{MA}, v{ML+6}")
    a(f"v_max3_f32 v{MB}, v{ML+8}, v{ML+10}, v{ML+12}")
    a(f"v_max_f32 v{MB}, v{MB}, v{ML+14}")
    a(f"v_max_f32 v{MALL}, v{MA}, v{MB}")
    a(f"v_cndmask_b32 v{MA}, v{MALL}, v{MA}, {sMK}")
    a(f"v_cndmask_b32 v{MB}, v{MALL}, v{MB}, {sMK}")
    for w in range(8):
        a(f"v_sub_f32 v{ML+2*w}, v{ML+2*w}, v{MA if w < 4 else MB}")
    for w in range(8):
        a(f"v_exp_f32 v{ML+2*w}, v{ML+2*w}")
    for w in range(8):
        L = LA if w < 4 else LB
        if w % 4 == 0:
            a(f"v_mul_f32 v{L}, v{ML+2*w}, v{ML+2*w+1}")
        else:
            a(f"v_fmac_f32 v{L}, v{ML+2*w}, v{ML+2*w+1}")
    a(f"v_fmac_f32 v{LA}, s{sNM}, v{LB}")
    lg.wait("o")
    OA = [40, 41, 42, 43]
    for xx in range(2):
        for w in range(8):
            d = OA[2 * xx + (w >> 2)]
            if w % 4 == 0:
                a(f"v_mul_f32 v{d}, v{OV+8*xx+w}, v{ML+2*w}")
            else:
                a(f"v_fmac_f32 v{d}, v{OV+8*xx+w}, v{ML+2*w}")
    for xx in range(2):
        a(f"v_fmac_f32 v{OA[2*xx]}, s{sNM}, v{OA[2*xx+1]}")
    for xx in range(2):
        a(f"v_cvt_pk_bf16_f32 v{X+xx}, v{OA[2*xx]}, v{OA[2*xx+1]}")
    a(f"v_cndmask_b32 v{T4}, v{MA}, v{MB}, vcc")
    a(f"v_cndmask_b32 v{T5}, v{LA}, v{LB}, vcc")
    vm.wait("wo")
    for i in range(32):
        vpat2(a, SEL, ACC, X + i // 16, i % 16, ar(4 * i, 4), i == 0, BC + 4 * (i & 1), T2 + (i & 1))
    a(f"v_mov_b32 v{T}, 0")
    a("s_mov_b32 exec_hi, s52")
    a(f"global_store_dwordx4 v{VST}, {vr(ACC,4)}, s[{sWS}:{sWS+1}] sc1")
    a(f"s_cmp_lg_u32 s{sW}, 4")
    a("s_cbranch_scc1 L_A_noml")
    a("s_and_b32 exec_hi, s52, 1")
    a("s_mov_b32 exec_lo, 1")
    a(f"global_store_dwordx2 v{VL3}, {vr(T4,2)}, s[{sWS}:{sWS+1}] sc1")
    a.label("L_A_noml")
    signal(a, "L_A_sig", T, T2, sDBG, C3, sW, 4)
    a.label("L_A_end")
    st.mark()
    st.dump(sWS, sW)
    a("s_endpgm")


def gen_B(a, P):
    vm = Cnt(a, "vmcnt", 63)
    lg = Cnt(a, "lgkmcnt", 15)
    st = Stamps(a, P["stamps"], 64)
    sX, sCK, sWQ, sWUK, sWUV, sWO, sGW, sOUT, sDBG, sWS = 4, 8, 10, 12, 14, 16, 18, 52, 54, 56
    rA, rB, rC = 24, 28, 32
    sW, sH, sGRP, sU, sT, sT2, sOFF, sIT, sTO, sWP = 36, 37, 38, 39, 40, 41, 42, 43, 48, 49
    sM1, sM0 = "s[44:45]", "s[46:47]"
    VL, VM_, VG, VZ = 1, 2, 3, 4
    SEL, XP, BC, ACC4 = 8, 12, 16, 24
    T, T2, T3, T4 = 28, 29, 30, 31
    VCK, VSW, VSR, VTR, VXW = 5, 6, 7, 14, 15
    WSZ = 0x400000 - 0x2000 + 256
    st.mark()
    a("s_load_dwordx2 s[4:5], s[0:1], 0")
    a("s_load_dwordx8 s[8:15], s[0:1], 48")
    a("s_load_dwordx4 s[16:19], s[0:1], 80")
    a("s_load_dwordx4 s[52:55], s[0:1], 96")
    a("s_load_dwordx2 s[56:57], s[0:1], 112")
    a("v_lshrrev_b32 v1, 6, v0")
    a(f"v_readfirstlane_b32 s{sW}, v1")
    a(f"s_and_b32 s{sT}, s2, 7")
    a(f"s_lshr_b32 s{sT2}, s2, 3")
    a(f"s_lshl_b32 s{sH}, s{sT}, 2")
    a(f"s_add_u32 s{sH}, s{sH}, s{sT2}")
    a(f"s_lshr_b32 s{sGRP}, s{sW}, 2")
    a(f"s_and_b32 s{sWP}, s{sW}, 3")
    a(f"s_lshl_b32 s{sU}, s{sH}, 1")
    a(f"s_add_u32 s{sU}, s{sU}, s{sGRP}")
    a(f"v_and_b32 v{VL}, 63, v0")
    a(f"v_and_b32 v{VM_}, 15, v0")
    a(f"v_bfe_u32 v{VG}, v0, 4, 2")
    a(f"v_mov_b32 v{VZ}, 0")
    a(f"s_lshl_b32 s3, s{sW}, 6")
    a(f"v_lshl_add_u32 v{T}, v{VG}, 4, s3")
    a(f"v_add_lshl_u32 v{T2}, v{T}, v{VM_}, 1")
    a(f"v_lshlrev_b32 v{T}, 13, v{T}")
    a(f"v_lshl_add_u32 v{VTR}, v{VM_}, 4, v{T}")
    a(f"v_add_u32 v{T}, s3, v{VG}")
    a(f"v_lshlrev_b32 v{T}, 13, v{T}")
    a(f"v_lshl_add_u32 v{T4}, v{VM_}, 4, v{T}")
    a(f"s_lshl_b32 s3, s{sWP}, 8")
    a(f"v_lshl_add_u32 v{T}, v{VM_}, 4, s3")
    a(f"v_lshl_add_u32 v{VCK}, v{VG}, 10, v{T}")
    a(f"s_lshl_b32 s{sT2}, s{sH}, 8")
    a(f"s_lshl_b32 s{sT}, s{sU}, 18")
    a(f"s_mov_b32 s{sOFF}, 0")
    a("s_waitcnt lgkmcnt(0)")
    vm.issue("x", f"global_load_ushort v{XP}, v{T2}, s[{sX}:{sX+1}]")
    vm.issue("x", f"global_load_ushort v{XP+1}, v{T2}, s[{sX}:{sX+1}] offset:1024")
    srd(a, rA, sWQ, f"s{sT2}", WSZ)
    for i in range(16):
        vm.issue(f"wq{i}", f"buffer_load_dwordx4 {ar(4*i,4)}, v{VTR}, s[{rA}:{rA+3}], s{sOFF} offen nt")
        if i < 15:
            a(f"s_add_u32 s{sOFF}, s{sOFF}, 0x2000")
    srd(a, rB, sWUK, f"s{sT2}", WSZ)
    a(f"s_mov_b32 s{sOFF}, 0")
    UK = 64
    for i in range(16):
        vm.issue(f"uk{i}", f"buffer_load_dwordx4 {vr(UK+4*i,4)}, v{T4}, s[{rB}:{rB+3}], s{sOFF} offen nt")
        if i < 15:
            a(f"s_add_u32 s{sOFF}, s{sOFF}, 0x8000")
    srd(a, rC, sCK, f"s{sT}", 0x40000)
    STG = [64, 96]

    def ckload(buf, i):
        vm.issue(f"ck{buf}", f"buffer_load_dwordx4 {ar(STG[buf]+4*i,4)}, v{VCK}, s[{rC}:{rC+3}], s{sTO} offen nt")
        a(f"s_add_u32 s{sTO}, s{sTO}, 0x1000")

    a(f"s_mov_b32 s{sTO}, 0")
    make_sel(a, SEL, VM_, T, T2, T3)
    a("s_mov_b32 s44, 0xcccccccc")
    a("s_mov_b32 s45, 0xcccccccc")
    a("s_mov_b32 s46, 0xaaaaaaaa")
    a("s_mov_b32 s47, 0xaaaaaaaa")
    a(f"v_lshrrev_b32 v{T}, 1, v{VG}")
    a(f"v_lshlrev_b32 v{T}, 9, v{T}")
    a(f"v_lshl_add_u32 v{T}, v{VM_}, 5, v{T}")
    a(f"v_and_b32 v{T2}, 1, v{VG}")
    a(f"v_lshl_add_u32 v{T}, v{T2}, 4, v{T}")
    a(f"s_lshl_b32 s3, s{sW}, 10")
    a(f"s_add_u32 s3, s3, {LDS_XCH}")
    a(f"v_add_u32 v{VXW}, s3, v{T}")
    vm.wait("x")
    a(f"v_lshl_or_b32 v{XP}, v{XP+1}, 16, v{XP}")
    for i in range(16):
        vm.wait(f"wq{i}")
        vpat2(a, SEL, ACC4, XP, i, ar(4 * i, 4), i == 0, BC + 4 * (i & 1), T + (i & 1))
        if i >= 16 - P["ck_early"]:
            pass
    lg.issue("w", f"ds_write_b128 v{VXW}, {vr(ACC4,4)}")
    for j in range(16):
        ckload(j // 8, j % 8)
    a(f"v_and_b32 v{T}, 255, v0")
    a(f"v_lshlrev_b32 v{T2}, 2, v{T}")
    a(f"v_add_u32 v{T2}, {LDS_XCH}, v{T2}")
    a(f"v_lshlrev_b32 v{T3}, 1, v{T}")
    a(f"v_add_u32 v{T3}, {LDS_XCH+8192}, v{T3}")
    a(f"v_lshlrev_b32 v{T}, 4, v{VM_}")
    a(f"v_add_u32 v{T}, {LDS_XCH+8192}, v{T}")
    lg.drain()
    a("s_barrier")
    for k in range(4):
        lg.issue("r", f"ds_read2st64_b32 {vr(32+2*k,2)}, v{T2} offset0:{8*k} offset1:{8*k+4}")
    lg.drain()
    a(f"v_pk_add_f32 {vr(32,2)}, {vr(32,2)}, {vr(34,2)}")
    a(f"v_pk_add_f32 {vr(36,2)}, {vr(36,2)}, {vr(38,2)}")
    a(f"v_pk_add_f32 {vr(32,2)}, {vr(32,2)}, {vr(36,2)}")
    a(f"v_add_f32 v32, v32, v33")
    a(f"v_cvt_pk_bf16_f32 v32, v32, v32")
    lg.issue("w", f"ds_write_b16 v{T3}, v32")
    lg.drain()
    a("s_barrier")
    QB = 16
    lg.issue("r", f"ds_read_b128 {vr(QB,4)}, v{T}")
    lg.issue("r", f"ds_read_b128 {vr(QB+4,4)}, v{T} offset:256")
    lg.drain()
    S0 = list(range(32, 48))
    S1 = list(range(48, 64))
    for i in range(16):
        vm.wait(f"uk{i}")
        for b, S in ((0, S0), (1, S1)):
            a(f"v_dot2_f32_bf16 v{S[i]}, v{UK+4*i}, v{QB+4*b}, 0")
            for r in range(1, 4):
                a(f"v_dot2_f32_bf16 v{S[i]}, v{UK+4*i+r}, v{QB+4*b+r}, v{S[i]}")
    transpose_reduce(a, S0, T, sM1, sM0)
    transpose_reduce(a, S1, T, sM1, sM0)
    a(f"v_cvt_pk_bf16_f32 v{T2}, v{S0[0]}, v{S1[0]}")
    a(f"s_lshl_b32 s3, s{sH}, 3")
    a(f"s_add_u32 s3, s3, s{sW}")
    a(f"s_lshl_b32 s3, s3, 6")
    a(f"v_lshl_add_u32 v{T}, v{VM_}, 2, v{VG}")
    a(f"v_add_lshl_u32 v{T}, v{T}, s3, 1")
    a(f"v_add_u32 v{T3}, 0x8000, v{T}")
    vm.issue("st", f"global_store_short v{T}, v{T2}, s[{sWS}:{sWS+1}] sc1")
    vm.issue("st", f"global_store_short_d16_hi v{T3}, v{T2}, s[{sWS}:{sWS+1}] sc1")
    st.mark()
    signal(a, "L_B_sig1", VZ, T, sDBG, C1, sW, 0)
    vm.p = []
    AF, QF = 32, 0
    SR, XT, PF = 32, 48, 16
    MRUN, LRUN, ALPHA = 24, 25, 26
    ACC = 64
    VUV = 27
    a(f"v_mov_b32 v{VUV}, v{VTR}")
    a(f"v_mul_u32_u24 v{T}, {STG_STRIDE}, v{VG}")
    a(f"v_lshl_add_u32 v{T}, v{VM_}, 4, v{T}")
    a(f"s_mul_i32 s3, s{sW}, {STG_WAVE}")
    a(f"v_add_u32 v{VSW}, s3, v{T}")
    a(f"v_and_b32 v{T}, 31, v{VL}")
    a(f"v_mul_u32_u24 v{T}, {STG_STRIDE}, v{T}")
    a(f"v_lshrrev_b32 v{T2}, 5, v{VL}")
    a(f"v_lshl_add_u32 v{T}, v{T2}, 4, v{T}")
    a(f"v_add_u32 v{VSR}, s3, v{T}")
    a(f"v_lshrrev_b32 v{T}, 2, v{VM_}")
    a(f"v_lshl_add_u32 v{T}, v{T2}, 2, v{T}")
    a(f"v_mul_u32_u24 v{T}, {STG_STRIDE}, v{T}")
    a(f"v_and_b32 v{T3}, 1, v{VG}")
    a(f"v_lshl_add_u32 v{T}, v{T3}, 5, v{T}")
    a(f"v_and_b32 v{T3}, 3, v{VM_}")
    a(f"v_lshl_add_u32 v{T}, v{T3}, 3, v{T}")
    a(f"v_add_u32 v{VTR}, s3, v{T}")
    VXR, VXWR = 12, 13
    a(f"s_lshl_b32 s3, s{sGRP}, 15")
    a(f"s_add_u32 s3, s3, {LDS_XCH}")
    a(f"v_lshl_add_u32 v{VXR}, v{VL}, 4, s3")
    a(f"s_lshl_b32 s3, s{sWP}, 12")
    a(f"v_add_u32 v{VXWR}, s3, v{VXR}")
    a(f"v_and_b32 v{T}, 31, v{VL}")
    a(f"v_lshlrev_b32 v{T}, 10, v{T}")
    a(f"v_lshl_add_u32 v{T}, v{T2}, 4, v{T}")
    a(f"s_lshr_b32 s{sT}, s{sH}, 4")
    a(f"s_lshl_b32 s{sT}, s{sT}, 15")
    a(f"s_lshl_b32 s3, s{sWP}, 8")
    a(f"s_add_u32 s3, s3, s{sT}")
    a(f"v_add_u32 v{T4}, s3, v{T}")
    for r in range(64):
        a(f"v_mov_b32 v{ACC+r}, 0")
    a(f"v_mov_b32 v{MRUN}, {NEGINF}")
    a(f"v_mov_b32 v{LRUN}, 0")
    a(f"s_mov_b32 s{sIT}, 0")
    poll(a, "L_B_p1", VZ, T, sDBG, C1, NB, sW, sT, 2)
    for s in range(8):
        vm.issue("qf", f"global_load_dwordx4 {ar(QF+4*s,4)}, v{T4}, s[{sWS}:{sWS+1}] offset:{32*s} sc1")
    vm.drain()
    st.mark()
    vm.p = ["ck0"] * 8 + ["ck1"] * 8
    entry = list(vm.p)
    a.label("L_B_loop")
    a(f"s_cmp_eq_u32 s{sIT}, 3")
    a(f"s_cselect_b32 s{rC+2}, 0, 0x40000")
    for p in range(2):
        vm.wait(f"ck{p}")
        for i in range(8):
            lg.issue("sw", f"ds_write_b128 v{VSW}, {ar(STG[p]+4*i,4)} offset:{i*4*STG_STRIDE}")
        for s in range(8):
            lg.issue(f"af{s}", f"ds_read_b128 {ar(AF+4*s,4)}, v{VSR} offset:{32*s}")
        lg.wait("sw")
        for i in range(8):
            ckload(p, i)
        for s in range(8):
            lg.wait(f"af{s}")
            c = "0" if s == 0 else vr(SR, 16)
            a(f"v_mfma_f32_32x32x16_bf16 {vr(SR,16)}, {ar(AF+4*s,4)}, {ar(QF+4*s,4)}, {c}")
        for q in range(4):
            lg.issue("xw", f"ds_write_b128 v{VXWR}, {vr(SR+4*q,4)} offset:{p*16384+q*1024}")
        lg.drain()
        a("s_barrier")
        for q in range(4):
            for w in range(4):
                dst = SR + 4 * q if w == 0 else XT + 4 * (w - 1) + 0
                lg.issue(f"x{w}", f"ds_read_b128 {vr(dst,4)}, v{VXR} offset:{p*16384+w*4096+q*1024}")
            lg.wait("x1")
            for k in (0, 2):
                a(f"v_pk_add_f32 {vr(SR+4*q+k,2)}, {vr(SR+4*q+k,2)}, {vr(XT+k,2)}")
            lg.wait("x3")
            for k in (0, 2):
                a(f"v_pk_add_f32 {vr(XT+4+k,2)}, {vr(XT+4+k,2)}, {vr(XT+8+k,2)}")
            for k in (0, 2):
                a(f"v_pk_add_f32 {vr(SR+4*q+k,2)}, {vr(SR+4*q+k,2)}, {vr(XT+4+k,2)}")
        for cb in range(4):
            for t in range(2):
                for sec in range(2):
                    lg.issue(f"tr{cb}{t}", f"ds_read_b64_tr_b16 {ar(AF+8*cb+4*t+2*sec,2)}, v{VTR} offset:{(16*t+8*sec)*STG_STRIDE+cb*64}")
        for rnd in range(2):
            for k in range(8):
                a(f"v_cvt_pk_bf16_f32 v{XT+k}, v{SR+2*k}, v{SR+2*k+1}")
            mul = SCALE if rnd == 0 else LOG2E
            for k in range(8):
                a(f"v_lshlrev_b32 v{SR+2*k}, 16, v{XT+k}")
                a(f"v_and_b32 v{SR+2*k+1}, 0xffff0000, v{XT+k}")
            for k in range(16):
                a(f"v_mul_f32 v{SR+k}, {mul}, v{SR+k}")
        a(f"v_max3_f32 v{T}, v{SR}, v{SR+1}, v{MRUN}")
        for k in range(2, 16, 2):
            a(f"v_max3_f32 v{T}, v{SR+k}, v{SR+k+1}, v{T}")
        a(f"v_mov_b32 v{T2}, v{T}")
        a(f"v_permlane32_swap_b32 v{T}, v{T2}")
        a(f"v_max_f32 v{T}, v{T}, v{T2}")
        a(f"v_sub_f32 v{ALPHA}, v{MRUN}, v{T}")
        a(f"v_exp_f32 v{ALPHA}, v{ALPHA}")
        a(f"v_mov_b32 v{MRUN}, v{T}")
        for k in range(16):
            a(f"v_sub_f32 v{SR+k}, v{SR+k}, v{T}")
        for k in range(16):
            a(f"v_exp_f32 v{SR+k}, v{SR+k}")
        a(f"v_mul_f32 v{LRUN}, v{LRUN}, v{ALPHA}")
        for k in range(8):
            a(f"v_cvt_pk_bf16_f32 v{PF+k}, v{SR+2*k}, v{SR+2*k+1}")
        for k in range(0, 64, 2):
            a(f"v_pk_mul_f32 {vr(ACC+k,2)}, {vr(ACC+k,2)}, {vr(ALPHA,2)} op_sel_hi:[1,0]")
        for k in range(0, 8, 2):
            a(f"v_pk_add_f32 {vr(SR+k,2)}, {vr(SR+k,2)}, {vr(SR+8+k,2)}")
        for k in range(0, 4, 2):
            a(f"v_pk_add_f32 {vr(SR+k,2)}, {vr(SR+k,2)}, {vr(SR+4+k,2)}")
        a(f"v_pk_add_f32 {vr(SR,2)}, {vr(SR,2)}, {vr(SR+2,2)}")
        a(f"v_add_f32 v{LRUN}, v{LRUN}, v{SR}")
        a(f"v_add_f32 v{LRUN}, v{LRUN}, v{SR+1}")
        for cb in range(4):
            for t in range(2):
                lg.wait(f"tr{cb}{t}")
                a(f"v_mfma_f32_32x32x16_bf16 {vr(ACC+16*cb,16)}, {ar(AF+8*cb+4*t,4)}, {vr(PF+4*t,4)}, {vr(ACC+16*cb,16)}")
    assert vm.p == entry and lg.p == []
    a(f"s_add_u32 s{sIT}, s{sIT}, 1")
    a(f"s_cmp_lt_u32 s{sIT}, 4")
    a("s_cbranch_scc1 L_B_loop")
    st.mark()
    a(f"v_mov_b32 v{T2}, v{LRUN}")
    a(f"v_permlane32_swap_b32 v{LRUN}, v{T2}")
    a(f"v_add_f32 v{LRUN}, v{LRUN}, v{T2}")
    a(f"v_lshrrev_b32 v{T2}, 5, v{VL}")
    a(f"v_lshlrev_b32 v{T2}, 3, v{T2}")
    a(f"v_sub_u32 v{T3}, v{VSR}, v{T2}")
    for cb in range(4):
        for q in range(4):
            r = ACC + 16 * cb + 4 * q
            d = SR + 2 * ((4 * cb + q) % 8)
            a(f"v_cvt_pk_bf16_f32 v{d}, v{r}, v{r+1}")
            a(f"v_cvt_pk_bf16_f32 v{d+1}, v{r+2}, v{r+3}")
            lg.issue("tw", f"ds_write_b64 v{T3}, {vr(d,2)} offset:{cb*64+q*16}")
    for i in range(8):
        lg.issue(f"tr{i}", f"ds_read_b128 {vr(ACC+4*i,4)}, v{VSW} offset:{i*4*STG_STRIDE}")
    a(f"s_lshl_b32 s{sT}, s{sU}, 15")
    a(f"s_add_u32 s{sT}, s{sT}, {WS_BPART}")
    srd(a, rC, sWS, f"s{sT}", 0x8000)
    a(f"v_and_b32 v{T}, 31, v{VL}")
    a(f"s_lshl_b32 s3, s{sU}, 8")
    a(f"s_add_u32 s3, s3, {WS_BML}")
    a(f"v_lshl_add_u32 v{T}, v{T}, 3, s3")
    vm.issue("st", f"global_store_dwordx2 v{T}, {vr(MRUN,2)}, s[{sWS}:{sWS+1}] sc1")
    a(f"s_mov_b32 s{sOFF}, 0")
    for i in range(8):
        lg.wait(f"tr{i}")
        vm.issue("st", f"buffer_store_dwordx4 {vr(ACC+4*i,4)}, v{VCK}, s[{rC}:{rC+3}], s{sOFF} offen sc1")
        if i < 7:
            a(f"s_add_u32 s{sOFF}, s{sOFF}, 0x1000")
    UV = 64
    a(f"s_lshl_b32 s{sT2}, s{sH}, 8")
    srd(a, rB, sWUV, f"s{sT2}", WSZ)
    a(f"s_mov_b32 s{sOFF}, 0")
    for i in range(16):
        vm.issue(f"uv{i}", f"buffer_load_dwordx4 {ar(UV+4*i,4)}, v{VUV}, s[{rB}:{rB+3}], s{sOFF} offen nt")
        if i < 15:
            a(f"s_add_u32 s{sOFF}, s{sOFF}, 0x2000")
    a(f"s_lshl_b32 s{sT2}, s{sH}, 17")
    a(f"s_lshl_b32 s3, s{sGRP}, 16")
    a(f"s_add_u32 s{sT2}, s{sT2}, s3")
    srd(a, rA, sWO, f"s{sT2}", 0x10000)
    a(f"s_lshl_b32 s3, s{sWP}, 8")
    a(f"v_lshl_add_u32 v{T}, v{VM_}, 4, s3")
    a(f"v_lshl_add_u32 v{T}, v{VG}, 14, v{T}")
    a(f"s_mov_b32 s{sOFF}, 0")
    for j in range(16):
        vm.issue("wo", f"buffer_load_dwordx4 {ar(4*j,4)}, v{T}, s[{rA}:{rA+3}], s{sOFF} offen offset:{(j%4)*1024} nt")
        if j % 4 == 3 and j < 15:
            a(f"s_add_u32 s{sOFF}, s{sOFF}, 0x1000")
    signal(a, "L_B_sig2", VZ, T2, sDBG, C2, sW, 0, keep=32)
    vm.p = vm.p[-32:] + ["atom"]
    st.mark()
    a(f"s_lshl_b32 s{sT}, s{sW}, 18")
    a(f"s_lshl_b32 s3, s{sH}, 10")
    a(f"s_add_u32 s{sT}, s{sT}, s3")
    a(f"s_add_u32 s{sT}, s{sT}, {WS_BPART}")
    srd(a, rC, sWS, f"s{sT}", 0x40000)
    a(f"v_lshlrev_b32 v{VCK}, 4, v{VL}")
    a(f"v_and_b32 v{T3}, 31, v{VL}")
    a(f"s_lshl_b32 s3, s{sGRP}, 13")
    a(f"s_lshl_b32 s{sT}, s{sH}, 3")
    a(f"s_add_u32 s{sT}, s{sT}, {WS_BML}")
    a(f"s_add_u32 s3, s3, s{sT}")
    a(f"v_lshl_add_u32 v{VSW}, v{T3}, 8, s3")
    a(f"s_lshl_b32 s3, s{sW}, 11")
    a(f"s_add_u32 s3, s3, {LDS_XCH}")
    a(f"v_lshl_add_u32 v{VTR}, v{VL}, 5, s3")
    poll(a, "L_B_p2", VZ, T, sDBG, C2, NB, sW, sT, 2)
    st.mark()
    PR, OML = 64, 12
    vm.issue("oml", f"global_load_dwordx2 {vr(OML,2)}, v{VSW}, s[{sWS}:{sWS+1}] sc1")
    a(f"s_mov_b32 s{sOFF}, 0")
    for i in range(8):
        vm.issue(f"pr{i}", f"buffer_load_dwordx4 {vr(PR+4*i,4)}, v{VCK}, s[{rC}:{rC+3}], s{sOFF} offen sc1")
        if i < 7:
            a(f"s_add_u32 s{sOFF}, s{sOFF}, 0x8000")
    vm.wait("oml")
    MM, TT = 6, 7
    a(f"v_mov_b32 v{MM}, v{OML}")
    for c in ("row_ror:8", "row_ror:4", "row_ror:2", "row_ror:1"):
        a(f"v_max_f32_dpp v{MM}, v{MM}, v{MM} {dpp(c)}")
    a(f"v_mov_b32 v{TT}, v{MM}")
    a(f"v_permlane16_swap_b32 v{MM}, v{TT}")
    a(f"v_max_f32 v{MM}, v{MM}, v{TT}")
    a(f"v_sub_f32 v{OML}, v{OML}, v{MM}")
    a(f"v_exp_f32 v{OML}, v{OML}")
    a(f"v_mul_f32 v{MM}, v{OML}, v{OML+1}")
    for c in ("row_ror:8", "row_ror:4", "row_ror:2", "row_ror:1"):
        a(f"v_add_f32_dpp v{MM}, v{MM}, v{MM} {dpp(c)}")
    a(f"v_mov_b32 v{TT}, v{MM}")
    a(f"v_permlane16_swap_b32 v{MM}, v{TT}")
    a(f"v_add_f32 v{MM}, v{MM}, v{TT}")
    a(f"v_rcp_f32 v{MM}, v{MM}")
    a(f"v_mul_f32 v{OML}, v{OML}, v{MM}")
    a(f"s_lshl_b32 s3, s{sWP}, 3")
    SWT = 84
    for i in range(8):
        a(f"v_readlane_b32 s{SWT+i}, v{OML}, s3")
        if i < 7:
            a("s_add_u32 s3, s3, 1")
    OA = 32
    for i in range(8):
        vm.wait(f"pr{i}")
        for k in range(4):
            a(f"v_lshlrev_b32 v{MM}, 16, v{PR+4*i+k}")
            a(f"v_and_b32 v{TT}, 0xffff0000, v{PR+4*i+k}")
            if i == 0:
                a(f"v_mul_f32 v{OA+2*k}, s{SWT}, v{MM}")
                a(f"v_mul_f32 v{OA+2*k+1}, s{SWT}, v{TT}")
            else:
                a(f"v_fmac_f32 v{OA+2*k}, s{SWT+i}, v{MM}")
                a(f"v_fmac_f32 v{OA+2*k+1}, s{SWT+i}, v{TT}")
    lg.issue("w", f"ds_write_b128 v{VTR}, {vr(OA,4)}")
    lg.issue("w", f"ds_write_b128 v{VTR}, {vr(OA+4,4)} offset:16")
    a(f"v_lshl_add_u32 v{T}, v{VG}, 4, v{VM_}")
    a(f"s_lshl_b32 s3, s{sW}, 8")
    a(f"s_add_u32 s3, s3, {LDS_XCH}")
    a(f"v_lshl_add_u32 v{T}, v{T}, 2, s3")
    lg.drain()
    a("s_barrier")
    R = 40
    for k in range(4):
        lg.issue("r", f"ds_read2st64_b32 {vr(R+2*k,2)}, v{T} offset0:{16*k} offset1:{16*k+8}")
    lg.drain()
    for b in range(2):
        a(f"v_pk_add_f32 {vr(R+4*b,2)}, {vr(R+4*b,2)}, {vr(R+4*b+2,2)}")
        a(f"v_add_f32 v{R+4*b}, v{R+4*b}, v{R+4*b+1}")
    a(f"v_cvt_pk_bf16_f32 v{XP}, v{R}, v{R+4}")
    for i in range(16):
        vpat2(a, SEL, ACC4, XP, i, ar(UV + 4 * i, 4), i == 0, BC + 4 * (i & 1), T + (i & 1))
    lg.issue("w", f"ds_write_b128 v{VXW}, {vr(ACC4,4)} offset:16384")
    a(f"v_lshl_add_u32 v{T}, v{VG}, 4, v{VM_}")
    a(f"s_lshl_b32 s3, s{sGRP}, 8")
    a(f"s_add_u32 s3, s3, {LDS_XCH+16384}")
    a(f"v_lshl_add_u32 v{T}, v{T}, 2, s3")
    lg.drain()
    a("s_barrier")
    for w in range(8):
        lg.issue("r", f"ds_read2st64_b32 {vr(R+2*w,2)}, v{T} offset0:{4*w} offset1:{4*w+2}")
    lg.drain()
    for k in range(0, 8, 2):
        a(f"v_pk_add_f32 {vr(R+k,2)}, {vr(R+k,2)}, {vr(R+8+k,2)}")
    for k in range(0, 4, 2):
        a(f"v_pk_add_f32 {vr(R+k,2)}, {vr(R+k,2)}, {vr(R+4+k,2)}")
    a(f"v_pk_add_f32 {vr(R,2)}, {vr(R,2)}, {vr(R+2,2)}")
    a(f"v_cvt_pk_bf16_f32 v{XP}, v{R}, v{R+1}")
    for i in range(16):
        vpat2(a, SEL, ACC4, XP, i, ar(4 * i, 4), i == 0, BC + 4 * (i & 1), T + (i & 1))
    a(f"v_lshrrev_b32 v{T3}, 1, v{VG}")
    a(f"v_lshlrev_b32 v{T3}, 11, v{T3}")
    a(f"v_lshl_add_u32 v{T3}, v{VM_}, 5, v{T3}")
    a(f"v_and_b32 v{T4}, 1, v{VG}")
    a(f"v_lshl_add_u32 v{T3}, v{T4}, 4, v{T3}")
    a(f"s_lshl_b32 s3, s{sU}, 12")
    a(f"s_lshl_b32 s{sT}, s{sWP}, 9")
    a(f"s_add_u32 s3, s3, s{sT}")
    a(f"s_add_u32 s3, s3, {WS_BOUT}")
    a(f"v_add_u32 v{T3}, s3, v{T3}")
    a(f"global_store_dwordx4 v{T3}, {vr(ACC4,4)}, s[{sWS}:{sWS+1}] sc1")
    signal(a, "L_B_sig3", VZ, T, sDBG, C3, sW, 0)
    vm.p = []
    if st.on:
        st.n = 5
        st.mark()
    a(f"s_cmp_lg_u32 s{sGRP}, 0")
    a("s_cbranch_scc1 L_F_end")
    sB, sCB = 38, 39
    VA, VA2, VB, VB2, VML, VX = 5, 6, 7, 8, 9, 10
    ML, AP, BP, XW, G = 12, 20, 36, 44, 46
    T, T2 = 47, 48
    a(f"s_lshr_b32 s{sB}, s{sH}, 4")
    a(f"s_and_b32 s{sCB}, s{sH}, 15")
    a(f"v_lshlrev_b32 v{T}, 2, v0")
    a(f"s_lshl_b32 s{sT}, s{sB}, 10")
    a(f"v_add_u32 v{VX}, s{sT}, v{T}")
    vm.issue("x", f"global_load_dword v{XW}, v{VX}, s[{sX}:{sX+1}]")
    vm.issue("x", f"global_load_dword v{XW+1}, v{T}, s[{sGW}:{sGW+1}]")
    a(f"v_lshrrev_b32 v{T}, 3, v0")
    a(f"v_and_b32 v{T2}, 7, v0")
    a(f"v_lshlrev_b32 v{T2}, 4, v{T2}")
    a(f"v_lshl_add_u32 v{T2}, v{T}, 13, v{T2}")
    a(f"s_lshl_b32 s3, s{sCB}, 7")
    a(f"s_lshl_b32 s{sT}, s{sB}, 18")
    a(f"s_add_u32 s{sT}, s{sT}, s3")
    a(f"s_add_u32 s{sT}, s{sT}, {WS_APART}")
    a(f"v_add_u32 v{VA}, s{sT}, v{T2}")
    a(f"v_add_u32 v{VA2}, 0x1000, v{VA}")
    a(f"s_lshl_b32 s{sT}, s{sB}, 11")
    a(f"s_add_u32 s{sT}, s{sT}, s3")
    a(f"s_add_u32 s{sT}, s{sT}, {WS_BOUT}")
    a(f"v_add_u32 v{VB}, s{sT}, v{T2}")
    a(f"v_add_u32 v{VB2}, 0x1000, v{VB}")
    a(f"s_lshl_b32 s{sT}, s{sB}, 10")
    a(f"s_add_u32 s{sT}, s{sT}, {WS_AML}")
    a(f"v_lshl_add_u32 v{VML}, v{T}, 5, s{sT}")
    vm.wait("x")
    a(f"v_lshlrev_b32 v{T}, 16, v{XW}")
    a(f"v_lshlrev_b32 v{T2}, 16, v{XW+1}")
    a(f"v_and_b32 v{XW}, 0xffff0000, v{XW}")
    a(f"v_and_b32 v{XW+1}, 0xffff0000, v{XW+1}")
    a(f"v_mul_f32 v{T}, v{T}, v{T2}")
    a(f"v_mul_f32 v{T2}, v{XW}, v{XW+1}")
    a(f"v_cvt_pk_bf16_f32 v{T}, v{T}, v{T2}")
    a(f"v_lshlrev_b32 v{T2}, 16, v{T}")
    a(f"v_and_b32 v{T}, 0xffff0000, v{T}")
    a(f"v_add_f32 v{G}, v{T}, v{T2}")
    wave_reduce(a, "v_add_f32", G, T)
    a(f"s_lshl_b32 s3, s{sW}, 2")
    a(f"v_mov_b32 v{T}, s3")
    lg.issue("w", f"ds_write_b32 v{T}, v{G} offset:2048")
    lg.drain()
    poll(a, "L_B_p3", VZ, T, sDBG, C3, NB if P.get("skipA") else NA + NB, sW, sT, P["sleep3"])
    ws = f"s[{sWS}:{sWS+1}]"
    vm.issue("ml", f"global_load_dwordx4 {vr(ML,4)}, v{VML}, {ws} sc1")
    vm.issue("ml", f"global_load_dwordx4 {vr(ML+4,4)}, v{VML}, {ws} offset:16 sc1")
    vm.issue("a0", f"global_load_dwordx4 {vr(AP,4)}, v{VA}, {ws} sc1")
    vm.issue("a1", f"global_load_dwordx4 {vr(AP+4,4)}, v{VA}, {ws} offset:2048 sc1")
    vm.issue("a2", f"global_load_dwordx4 {vr(AP+8,4)}, v{VA2}, {ws} sc1")
    vm.issue("a3", f"global_load_dwordx4 {vr(AP+12,4)}, v{VA2}, {ws} offset:2048 sc1")
    vm.issue("b", f"global_load_dwordx4 {vr(BP,4)}, v{VB}, {ws} sc1")
    vm.issue("b", f"global_load_dwordx4 {vr(BP+4,4)}, v{VB2}, {ws} sc1")
    GG = 50
    lg.issue("g", f"ds_read_b128 {vr(GG,4)}, v{VZ} offset:2048")
    lg.drain()
    a(f"v_pk_add_f32 {vr(GG,2)}, {vr(GG,2)}, {vr(GG+2,2)}")
    a(f"v_add_f32 v{G}, v{GG}, v{GG+1}")
    bf16r(a, G)
    a(f"v_mul_f32 v{G}, 0xbfb8aa3b, v{G}")
    a(f"v_exp_f32 v{G}, v{G}")
    a(f"v_add_f32 v{G}, 1.0, v{G}")
    a(f"v_rcp_f32 v{G}, v{G}")
    bf16r(a, G)
    a(f"v_sub_f32 v{GG}, 1.0, v{G}")
    bf16r(a, GG)
    a(f"v_and_b32 v{T}, 7, v0")
    a(f"v_lshrrev_b32 v{T2}, 4, v0")
    a(f"v_lshl_add_u32 v{T}, v{T}, 2, v{T2}")
    a(f"s_lshl_b32 s3, s{sH}, 6")
    a(f"v_lshl_add_u32 v{VX}, v{T}, 1, s3")
    vm.wait("ml")
    a(f"v_max3_f32 v{T}, v{ML}, v{ML+2}, v{ML+4}")
    a(f"v_max_f32 v{T}, v{T}, v{ML+6}")
    for sp in range(4):
        a(f"v_sub_f32 v{ML+2*sp}, v{ML+2*sp}, v{T}")
    for sp in range(4):
        a(f"v_exp_f32 v{ML+2*sp}, v{ML+2*sp}")
    a(f"v_mul_f32 v{T}, v{ML}, v{ML+1}")
    for sp in range(1, 4):
        a(f"v_fmac_f32 v{T}, v{ML+2*sp}, v{ML+2*sp+1}")
    a(f"v_rcp_f32 v{T}, v{T}")
    for sp in range(4):
        a(f"v_mul_f32 v{ML+2*sp}, v{ML+2*sp}, v{T}")
    vm.wait("a0")
    for k in range(4):
        a(f"v_mul_f32 v{AP+k}, v{AP+k}, v{ML}")
    for sp in range(1, 4):
        vm.wait(f"a{sp}")
        for k in range(4):
            a(f"v_fmac_f32 v{AP+k}, v{AP+4*sp+k}, v{ML+2*sp}")
    vm.wait("b")
    for k in range(4):
        a(f"v_add_f32 v{AP+4+k}, v{BP+k}, v{BP+4+k}")
    V = [AP + k for k in range(8)]
    for k in range(8):
        a(f"v_add_f32_dpp v{V[k]}, v{V[k]}, v{V[k]} {dpp('row_ror:8')}")
    for k in range(0, 8, 2):
        a(f"v_permlane16_swap_b32 v{V[k]}, v{V[k+1]}")
    for k in range(0, 8, 2):
        a(f"v_add_f32 v{V[k]}, v{V[k]}, v{V[k+1]}")
    for k in range(0, 8, 4):
        a(f"v_permlane32_swap_b32 v{V[k]}, v{V[k+2]}")
    a(f"v_add_f32 v{V[0]}, v{V[0]}, v{V[2]}")
    a(f"v_add_f32 v{V[1]}, v{V[4]}, v{V[6]}")
    a(f"v_lshlrev_b32 v{T}, 3, v0")
    lg.issue("w", f"ds_write_b64 v{T}, {vr(V[0],2)}")
    lg.drain()
    a("s_barrier")
    a(f"s_cmp_lg_u32 s{sW}, 0")
    a("s_cbranch_scc1 L_F_end")
    for w in range(4):
        lg.issue("r", f"ds_read_b64 {vr(AP+2*w,2)}, v{T} offset:{512*w}")
    lg.drain()
    a(f"v_pk_add_f32 {vr(AP,2)}, {vr(AP,2)}, {vr(AP+2,2)}")
    a(f"v_pk_add_f32 {vr(AP+4,2)}, {vr(AP+4,2)}, {vr(AP+6,2)}")
    a(f"v_pk_add_f32 {vr(AP,2)}, {vr(AP,2)}, {vr(AP+4,2)}")
    a(f"v_cvt_pk_bf16_f32 v{T}, v{AP}, v{AP+1}")
    a(f"v_lshlrev_b32 v{AP}, 16, v{T}")
    a(f"v_and_b32 v{AP+1}, 0xffff0000, v{T}")
    a(f"v_mul_f32 v{AP}, v{AP}, v{G}")
    a(f"v_mul_f32 v{AP+1}, v{AP+1}, v{GG}")
    a(f"v_cvt_pk_bf16_f32 v{T}, v{AP}, v{AP+1}")
    a(f"v_lshlrev_b32 v{AP}, 16, v{T}")
    a(f"v_and_b32 v{AP+1}, 0xffff0000, v{T}")
    a(f"v_add_f32 v{AP}, v{AP}, v{AP+1}")
    a(f"v_cvt_pk_bf16_f32 v{AP}, v{AP}, v{AP}")
    a("s_mov_b32 exec_lo, 0x00ff00ff")
    a("s_mov_b32 exec_hi, 0x00ff00ff")
    a(f"global_store_short v{VX}, v{AP}, s[{sOUT}:{sOUT+1}]")
    a.label("L_F_end")
    st.mark()
    st.dump(sWS, sW)
    a("s_endpgm")


def build(P):
    a = Asm()
    a.raw(f"; @launch grid=(256,1,1) block=(512,1,1) lds={LDS_TOTAL}")
    a.raw('.amdgcn_target "amdgcn-amd-amdhsa--gfx950"\n.text')
    a.raw(f".globl {NAME}\n.p2align 8\n.type {NAME},@function\n{NAME}:")
    a(f"s_cmp_lt_u32 s2, {NB}")
    a("s_cbranch_scc1 L_B_entry")
    a(f"s_cmp_lt_u32 s2, {NA+NB}")
    a("s_cbranch_scc1 L_A_entry")
    a("s_endpgm")
    a.label("L_A_entry")
    if P.get("skipA"):
        a("s_endpgm")
    gen_A(a, P)
    a.raw(".p2align 6")
    a.label("L_B_entry")
    if P.get("skipB"):
        a("s_endpgm")
    gen_B(a, P)
    a.raw('.section .rodata,"a"')
    a.raw(f""".p2align 6
.amdhsa_kernel {NAME}
  .amdhsa_next_free_vgpr 256
  .amdhsa_next_free_sgpr 102
  .amdhsa_accum_offset 128
  .amdhsa_group_segment_fixed_size 0
  .amdhsa_kernarg_size 120
  .amdhsa_user_sgpr_count 2
  .amdhsa_user_sgpr_kernarg_segment_ptr 1
  .amdhsa_system_sgpr_workgroup_id_x 1
.end_amdhsa_kernel""")
    return a.text()


DEFAULT = dict(D=3, D0=16, w_nt=0, k_first=4, stamps=0, wo_start=20, wo_every=3, sleep3=4, ck_early=0)

if __name__ == "__main__":
    out = sys.argv[1]
    P = dict(DEFAULT)
    for kv in sys.argv[2:]:
        k, v = kv.split("=")
        P[k] = int(v)
    open(out, "w").write(build(P))
```

```python
import sys
sys.path.insert(0, "dev")
from asmlib import *
from gen import (Cnt, dpp, transpose_reduce, tr_step1, wave_reduce, bf16r, srd, LOG2E, SCALE, NEGINF,
                 WS_QABS, WS_BML, WS_AML, WS_BPART, WS_APART, WS_STAMP, STG_STRIDE, STG_WAVE)
WS_BOUT = 0x600000

NAME = "gated_mix__mha_block_cached__compressed_kv_cla__decode_kernel"
LDS_XCH = 8 * STG_WAVE
LDS_TOTAL = LDS_XCH + 65536
C1, C2, C3 = 0, 64, 128
NB, NA = 32, 224


class Stamps:
    def __init__(self, a, on, sbase):
        self.a, self.on, self.sbase, self.n = a, on, sbase, 0

    def mark(self):
        if self.on == 1:
            assert self.n < 7
            self.a(f"s_memrealtime s[{self.sbase + 2*self.n}:{self.sbase + 2*self.n + 1}]")
            self.a("s_waitcnt lgkmcnt(0)")
            self.n += 1

    def dump(self, wsreg, wave_s):
        if not self.on:
            return
        a = self.a
        a("s_getreg_b32 s3, hwreg(HW_REG_HW_ID)")
        a(f"s_mov_b32 s{self.sbase+14}, s3")
        a("s_getreg_b32 s3, hwreg(HW_REG_XCC_ID)")
        a(f"s_mov_b32 s{self.sbase+15}, s3")
        a("s_mov_b64 exec, -1")
        for i in range(16):
            a(f"v_mov_b32 v{i+4}, s{self.sbase+i}")
        a("s_lshl_b32 s3, s2, 3")
        a(f"s_add_u32 s3, s3, s{wave_s}")
        a("s_lshl_b32 s3, s3, 6")
        a(f"s_add_u32 s3, s3, {WS_STAMP}")
        a("v_mov_b32 v1, s3")
        a("s_mov_b64 exec, 1")
        for i in range(4):
            a(f"global_store_dwordx4 v1, v[{4+4*i}:{7+4*i}], s[{wsreg}:{wsreg+1}] offset:{16*i}")


def make_sel(a, SEL, VM_, T, T2, T3):
    a(f"v_mov_b32 v{T}, 0x0100")
    a(f"v_mov_b32 v{T2}, 0x0302")
    a(f"v_cmp_gt_u32 vcc, 8, v{VM_}")
    a(f"v_cndmask_b32 v{T}, v{T2}, v{T}, vcc")
    a(f"v_lshlrev_b32 v{T2}, 16, v{T}")
    a(f"v_or_b32 v{T2}, 0x0c0c, v{T2}")
    a(f"v_or_b32 v{T}, 0x0c0c0000, v{T}")
    a(f"v_and_b32 v{T3}, 1, v{VM_}")
    a(f"v_cmp_eq_u32 vcc, 1, v{T3}")
    a(f"v_cndmask_b32 v{T}, v{T}, v{T2}, vcc")
    a(f"v_bfe_u32 v{T2}, v{VM_}, 1, 2")
    a(f"v_mov_b32 v{T3}, 0x0c0c0c0c")
    for r in range(4):
        a(f"v_cmp_eq_u32 vcc, {r}, v{T2}")
        a(f"v_cndmask_b32 v{SEL+r}, v{T3}, v{T}, vcc")


def vpat2(a, SEL, acc, src, i, data, first, bc, t):
    a(f"v_mov_b32_dpp v{t}, v{src} {dpp(f'row_newbcast:{i}')}")
    for r in range(4):
        a(f"v_perm_b32 v{bc+r}, v{t}, v{t}, v{SEL+r}")
    c = "0" if first else vr(acc, 4)
    a(f"v_mfma_f32_16x16x32_bf16 {vr(acc,4)}, {vr(bc,4)}, {data}, {c}")


def poll(a, name, vaddr, vt, sdbg, off, target, sW, sT, sleep=4):
    a(f"s_cmp_lg_u32 s{sW}, 0")
    a(f"s_cbranch_scc1 {name}_done")
    a(f"s_mov_b32 s{sT}, 0")
    a.label(f"{name}_loop")
    a(f"global_load_dword v{vt}, v{vaddr}, s[{sdbg}:{sdbg+1}] offset:{off} sc1")
    a("s_waitcnt vmcnt(0)")
    a(f"v_readfirstlane_b32 s3, v{vt}")
    a(f"s_cmp_ge_u32 s3, {target}")
    a(f"s_cbranch_scc1 {name}_done")
    a(f"s_sleep {sleep}")
    a(f"s_add_u32 s{sT}, s{sT}, 1")
    a(f"s_cmp_lt_u32 s{sT}, 0x8000")
    a(f"s_cbranch_scc1 {name}_loop")
    a.label(f"{name}_done")
    a("s_barrier")


def signal(a, name, vzero, vt, sdbg, off, sW, wave, keep=0):
    a(f"s_waitcnt vmcnt({keep})")
    a("s_barrier")
    a(f"s_cmp_lg_u32 s{sW}, {wave}")
    a(f"s_cbranch_scc1 {name}_skip")
    a("s_mov_b64 exec, 1")
    a(f"v_mov_b32 v{vt}, 1")
    a(f"global_atomic_add v{vzero}, v{vt}, s[{sdbg}:{sdbg+1}] offset:{off} sc1")
    a("s_mov_b64 exec, -1")
    a.label(f"{name}_skip")


def gen_A(a, P):
    D, D0 = P["D"], P["D0"]
    WN = " nt" if P["w_nt"] else ""
    vm = Cnt(a, "vmcnt", 63)
    lg = Cnt(a, "lgkmcnt", 15)
    st = Stamps(a, P["stamps"], 64)
    VL1, VM_, VG, VO = 1, 2, 3, 4
    MASK, Q, BC, ACC = 8, 12, 16, 24
    MRUN, LRUN, PP, T = 28, 29, 30, 31
    S = list(range(32, 48))
    X, SEL, VW, T2, T3, T4, T5, VNI = 48, 52, 56, 58, 59, 60, 61, 57
    VL3, VST = 62, 63
    RING = 64
    WA = 64
    sX, sK, sV, sWQ, sWO, sDBG, sWS = 4, 6, 8, 10, 12, 48, 50
    rK, rV, rW = 16, 20, 24
    sW, sH, sB, sJ7, sN, sWP, sHF, sT, sT2, sU0, sOFF, sIT = 32, 33, 34, 35, 36, 37, 38, 39, 40, 41, 42, 43
    sM1, sM0, sMK = "s[44:45]", "s[46:47]", "s[52:53]"
    s16, s5, sCUR, sNXT, sNM = 54, 55, 56, 57, 58
    st.mark()
    a("s_load_dwordx8 s[4:11], s[0:1], 0")
    a("s_load_dwordx2 s[12:13], s[0:1], 32")
    a("s_load_dwordx4 s[48:51], s[0:1], 104")
    a("v_lshrrev_b32 v1, 6, v0")
    a(f"v_readfirstlane_b32 s{sW}, v1")
    a(f"s_sub_u32 s3, s2, {NB}")
    a(f"s_and_b32 s{sH}, s3, 7")
    a(f"s_lshl_b32 s{sH}, s{sH}, 2")
    a(f"s_lshr_b32 s3, s3, 3")
    a(f"s_mul_i32 s{sT}, s3, 37")
    a(f"s_lshr_b32 s{sT}, s{sT}, 8")
    a(f"s_add_u32 s{sH}, s{sH}, s{sT}")
    a(f"s_mul_i32 s{sT}, s{sT}, 7")
    a(f"s_sub_u32 s{sJ7}, s3, s{sT}")
    a(f"s_lshl_b32 s3, s{sJ7}, 3")
    a(f"s_add_u32 s3, s3, s{sW}")
    a(f"s_cmp_ge_u32 s3, 28")
    a(f"s_cselect_b32 s{sB}, 1, 0")
    a(f"s_cselect_b32 s{sT}, 28, 0")
    a(f"s_sub_u32 s3, s3, s{sT}")
    a(f"s_cmp_lt_u32 s3, 4")
    a(f"s_cselect_b32 s{sN}, 1, 0")
    a(f"s_mov_b32 s{s16}, 0x4000")
    a(f"s_cselect_b32 s{s5}, s{s16}, 0x7f000000")
    a(f"s_add_u32 s{sN}, s{sN}, 73")
    a(f"s_min_u32 s{sT}, s3, 4")
    a(f"s_mul_i32 s3, s3, 73")
    a(f"s_add_u32 s3, s3, s{sT}")
    a(f"s_lshl_b32 s{sT}, s{sB}, 5")
    a(f"s_add_u32 s{sT}, s{sT}, s{sH}")
    a(f"s_lshl_b32 s{sT}, s{sT}, 11")
    a(f"s_add_u32 s{sT}, s{sT}, s3")
    a(f"s_lshl_b32 s{sT}, s{sT}, 10")
    a(f"s_lshl_b32 s{sT2}, s{sN}, 10")
    a(f"s_sub_u32 s{sCUR}, s{sT2}, 0xc000")
    a(f"s_sub_u32 s{sNXT}, s{sT2}, 0x8000")
    a(f"s_and_b32 s{sWP}, s{sW}, 3")
    a(f"s_lshr_b32 s{sHF}, s{sW}, 2")
    a("v_and_b32 v1, 63, v0")
    a(f"v_and_b32 v{VM_}, 15, v0")
    a(f"v_bfe_u32 v{VG}, v0, 4, 2")
    a(f"v_lshlrev_b32 v{VO}, 4, v1")
    for k in range(1, 4):
        a(f"v_add_u32 v{VO+k}, {4096*k}, v{VO}")
    a(f"v_lshlrev_b32 v{T2}, 1, v0")
    a(f"v_sub_u32 v{T}, v0, v{VM_}")
    a(f"v_lshlrev_b32 v{T}, 13, v{T}")
    a(f"v_lshl_add_u32 v{VW}, v{VM_}, 4, v{T}")
    a(f"s_mov_b32 s{sOFF}, 0")
    a(f"s_lshl_b32 s3, s{sH}, 8")
    a("s_waitcnt lgkmcnt(0)")
    vm.issue("x", f"global_load_ushort v{X}, v{T2}, s[{sX}:{sX+1}]")
    vm.issue("x", f"global_load_ushort v{X+1}, v{T2}, s[{sX}:{sX+1}] offset:1024")
    srd(a, rK, sK, f"s{sT}", f"s{sT2}")
    srd(a, rW, sWQ, "s3", 0x400000 - 0x2000 + 256)
    srd(a, rV, sV, f"s{sT}", f"s{sT2}")

    nl = [16, 10, 16, 16]
    seq = []
    for it in range(4):
        seq += [("K", it, i) for i in range(nl[it])]
        seq += [("V", it, i) for i in range(nl[it])]

    def ld(p):
        kv, it, i = seq[p]
        r = rK if kv == "K" else rV
        so = ["0", f"s{s5}" if i == 9 else f"s{s16}", f"s{sCUR}", f"s{sNXT}"][it]
        dst = vr(RING + 4 * i, 4) if kv == "K" else ar(4 * i, 4)
        tg = f"{kv}{it}_{i}"
        vm.issue(tg, f"buffer_load_dwordx4 {dst}, v{VO + i//4}, s[{r}:{r+3}], {so} offen offset:{(i%4)*1024} nt")

    kf = P["k_first"]
    for p in range(kf):
        ld(p)
    for i in range(16):
        vm.issue(f"wq{i}", f"buffer_load_dwordx4 {ar(WA+4*i,4)}, v{VW}, s[{rW}:{rW+3}], s{sOFF} offen{WN}")
        if i < 15:
            a(f"s_add_u32 s{sOFF}, s{sOFF}, 0x2000")
    for p in range(kf, D0):
        ld(p)
    a(f"v_and_b32 v{T}, 1, v{VM_}")
    a(f"v_lshlrev_b32 v{T}, 4, v{T}")
    a(f"v_mov_b32 v{T3}, 0xffff")
    a(f"v_lshlrev_b32 v{T3}, v{T}, v{T3}")
    a(f"v_bfe_u32 v{T}, v{VM_}, 1, 2")
    for r in range(4):
        a(f"v_cmp_eq_u32 vcc, {r}, v{T}")
        a(f"v_cndmask_b32 v{MASK+r}, 0, v{T3}, vcc")
    make_sel(a, SEL, VM_, T, T3, T4)
    a("s_mov_b32 s44, 0xcccccccc")
    a("s_mov_b32 s45, 0xcccccccc")
    a("s_mov_b32 s46, 0xaaaaaaaa")
    a("s_mov_b32 s47, 0xaaaaaaaa")
    a(f"v_mov_b32 v{VNI}, {NEGINF}")
    a(f"v_and_b32 v{T}, 1, v{VG}")
    a(f"v_lshlrev_b32 v{T}, 4, v{T}")
    a(f"v_lshl_add_u32 v{VL1}, v{VM_}, 5, v{T}")
    a(f"s_lshl_b32 s3, s{sW}, 9")
    a(f"v_add_u32 v{VST}, s3, v{VL1}")
    a(f"v_lshrrev_b32 v{T}, 1, v{VG}")
    a(f"v_lshl_add_u32 v{T}, v{T}, 9, v{VST}")
    a(f"v_add_u32 v{T4}, s3, v{T}")
    a(f"s_lshl_b32 s3, s{sB}, 9")
    a(f"v_lshl_add_u32 v{T}, v{VG}, 11, s3")
    a(f"v_lshl_add_u32 v{VL3}, v{VM_}, 5, v{T}")
    a(f"s_lshl_b32 s3, s{sWP}, 8")
    a(f"s_lshl_b32 s{sT}, s{sHF}, 16")
    a(f"s_add_u32 s3, s3, s{sT}")
    a(f"v_lshl_add_u32 v{T}, v{VM_}, 4, s3")
    a(f"v_lshl_add_u32 v{T5}, v{VG}, 14, v{T}")
    a(f"v_mov_b32 v{MRUN}, {NEGINF}")
    a(f"v_mov_b32 v{LRUN}, 0")
    vm.wait("x")
    a(f"v_lshl_or_b32 v{X}, v{X+1}, 16, v{X}")
    st.mark()

    def mstep(src, i, data, first):
        bc = BC + 4 * (i & 1)
        for r in range(4):
            a(f"v_and_b32_dpp v{bc+r}, v{src}, v{MASK+r} {dpp(f'row_newbcast:{i}')}")
        return bc

    for i in range(16):
        vm.wait(f"wq{i}")
        vpat2(a, SEL, ACC, X, i, ar(WA + 4 * i, 4), i == 0, BC + 4 * (i & 1), T2 + (i & 1))
    a(f"s_lshl_b32 s3, s{sH}, 17")
    srd(a, rW, sWO, "s3", 0x20000)
    a(f"v_mov_b32 v{VW}, v{T5}")
    a(f"s_mov_b32 s{sOFF}, 0")
    lg.issue("w", f"ds_write_b128 v{T4}, {vr(ACC,4)}")
    lg.drain()
    a("s_barrier")
    for k, off in enumerate((0, 16, 1024, 1040)):
        lg.issue("q", f"ds_read_b128 {vr(32+4*k,4)}, v{VL3} offset:{off}")
    for r in range(4):
        a(f"v_mov_b32 v{ACC+r}, 0")
    lg.drain()
    for k in range(0, 8, 2):
        a(f"v_pk_add_f32 {vr(32+k,2)}, {vr(32+k,2)}, {vr(40+k,2)}")
    for k in range(4):
        a(f"v_permlane32_swap_b32 v{32+k}, v{36+k}")
    for k in (0, 2):
        a(f"v_pk_add_f32 {vr(32+k,2)}, {vr(32+k,2)}, {vr(36+k,2)}")
    a("v_permlane16_swap_b32 v32, v34")
    a("v_permlane16_swap_b32 v33, v35")
    a(f"v_pk_add_f32 {vr(32,2)}, {vr(32,2)}, {vr(34,2)}")
    a(f"v_cvt_pk_bf16_f32 v{Q}, v32, v33")
    a(f"v_mov_b32 v{Q+1}, v{Q}")
    a(f"v_permlane16_swap_b32 v{Q}, v{Q+1}")
    a(f"v_mov_b32 v{Q+2}, v{Q}")
    a(f"v_mov_b32 v{Q+3}, v{Q+1}")
    a(f"v_permlane32_swap_b32 v{Q}, v{Q+2}")
    a(f"v_permlane32_swap_b32 v{Q+1}, v{Q+3}")
    st.mark()

    state = dict(nxt=D0, wo=0)
    LOOP0 = 2 * (nl[0] + nl[1])

    def woload():
        j = state["wo"]
        vm.issue("wo", f"buffer_load_dwordx4 {ar(WA+4*j,4)}, v{VW}, s[{rW}:{rW+3}], s{sOFF} offen offset:{(j%4)*1024}{WN}")
        if j % 4 == 3 and j < 15:
            a(f"s_add_u32 s{sOFF}, s{sOFF}, 0x1000")
        state["wo"] += 1

    def slot_free(q, p, after):
        kv, it, i = seq[q]
        prev = max([r for r in range(q) if seq[r][2] == i and seq[r][0] == kv], default=-1)
        return prev < p or (prev == p and after)

    def advance(p, after):
        while state["nxt"] <= p + D and slot_free(state["nxt"], p, after):
            if state["nxt"] == LOOP0:
                while state["wo"] < 16:
                    woload()
            ld(state["nxt"])
            state["nxt"] += 1
        if after and p >= P["wo_start"] and (p - P["wo_start"]) % P["wo_every"] == 0 and state["wo"] < 16:
            woload()

    p = 0
    for it in range(3):
        n = nl[it]
        done = []
        if it == 2:
            assert state["wo"] == 16 and state["nxt"] == LOOP0 + D, state
            entry = vm.p[-D:]
            vm.p = list(entry)
            a(f"s_mov_b32 s{sIT}, 0")
            a.label("L_A_loop")
        if n < 16:
            for i in range(n, 16):
                a(f"v_mov_b32 v{S[i]}, 0")
        for i in range(n):
            vm.wait(f"K{it}_{i}")
            advance(p, False)
            k = RING + 4 * i
            a(f"v_dot2_f32_bf16 v{S[i]}, v{k}, v{Q}, 0")
            for r in range(1, 4):
                a(f"v_dot2_f32_bf16 v{S[i]}, v{k+r}, v{Q+r}, v{S[i]}")
            advance(p, True)
            if i >= 9 and n == 16:
                tr_step1(a, S, i - 9)
                done.append(i - 9)
            p += 1
        transpose_reduce(a, S, T, sM1, sM0, done)
        s0 = S[0]
        bf16r(a, s0)
        a(f"v_mul_f32 v{s0}, {SCALE}, v{s0}")
        bf16r(a, s0)
        a(f"v_mul_f32 v{s0}, {LOG2E}, v{s0}")
        if n < 16:
            a(f"s_sub_u32 s3, s{sN}, 64")
            a(f"v_cmp_gt_u32 vcc, s3, v{VM_}")
            a(f"v_cndmask_b32 v{s0}, v{VNI}, v{s0}, vcc")
        a(f"v_max_f32 v{T2}, v{s0}, v{MRUN}")
        wave_reduce(a, "v_max_f32", T2, T3)
        a(f"v_sub_f32 v{T3}, v{MRUN}, v{T2}")
        a(f"v_sub_f32 v{T4}, v{s0}, v{T2}")
        a(f"v_exp_f32 v{T3}, v{T3}")
        a(f"v_exp_f32 v{T4}, v{T4}")
        a(f"v_mov_b32 v{MRUN}, v{T2}")
        a(f"v_cvt_pk_bf16_f32 v{PP}, v{T4}, v{T4}")
        a(f"v_fma_f32 v{LRUN}, v{LRUN}, v{T3}, v{T4}")
        for r in range(4):
            a(f"v_mul_f32 v{ACC+r}, v{ACC+r}, v{T3}")
        for i in range(n):
            bc = mstep(PP, i, None, None)
            vm.wait(f"V{it}_{i}")
            advance(p, False)
            a(f"v_mfma_f32_16x16x32_bf16 {vr(ACC,4)}, {vr(bc,4)}, {ar(4*i,4)}, {vr(ACC,4)}")
            advance(p, True)
            p += 1
    assert [t.replace("3_", "2_") for t in vm.p] == entry, (vm.p, entry)
    a(f"s_mov_b32 s{sCUR}, s{sNXT}")
    a(f"s_add_u32 s{sNXT}, s{sNXT}, 0x4000")
    a(f"s_add_u32 s{sIT}, s{sIT}, 1")
    a(f"s_cmp_lt_u32 s{sIT}, 3")
    a("s_cbranch_scc1 L_A_loop")
    st.mark()
    lg.issue("w", f"ds_write_b128 v{VST}, {vr(ACC,4)} offset:8192")
    wave_reduce(a, "v_add_f32", LRUN, T3)
    a(f"s_lshl_b32 s3, s{sW}, 3")
    a(f"v_mov_b32 v{T}, s3")
    lg.issue("w", f"ds_write_b64 v{T}, {vr(MRUN,2)} offset:12288")
    a(f"s_lshl_b32 s3, s{sHF}, 8")
    a(f"v_and_b32 v{T2}, 63, v0")
    a(f"v_lshl_add_u32 v{T3}, v{T2}, 2, s3")
    a(f"s_cmp_eq_u32 s{sJ7}, 3")
    a("s_cselect_b32 s52, -1, 0")
    a("s_cselect_b32 s53, -1, 0")
    a(f"s_cselect_b32 s{sNM}, 0, 1.0")
    a(f"s_lshl_b32 s{sU0}, s{sH}, 2")
    a(f"s_add_u32 s{sT}, s{sU0}, 128")
    a(f"s_add_u32 s{sU0}, s{sU0}, s{sJ7}")
    a(f"s_cmp_gt_u32 s{sJ7}, 3")
    a(f"s_cselect_b32 s3, 125, 0")
    a(f"s_add_u32 s{sU0}, s{sU0}, s3")
    a(f"v_mov_b32 v{T}, s{sU0}")
    a(f"v_mov_b32 v{T2}, s{sT}")
    a(f"v_cmp_lt_u32 vcc, 1, v{VG}")
    a(f"v_cndmask_b32 v{T}, v{T}, v{T2}, vcc")
    a(f"s_lshl_b32 s3, s{sW}, 9")
    a(f"s_add_u32 s3, s3, {WS_APART}")
    a(f"v_add_u32 v{VST}, s3, v{VL1}")
    a(f"v_lshl_add_u32 v{VST}, v{T}, 12, v{VST}")
    a(f"v_lshlrev_b32 v{T}, 3, v{T}")
    a(f"v_add_u32 v{VL3}, {WS_AML}, v{T}")
    a(f"v_mov_b32 v{T}, 0")
    lg.drain()
    a("s_barrier")
    vm.drain()
    ML = 64
    OV = 80
    for k in range(4):
        lg.issue("ml", f"ds_read_b128 {vr(ML+4*k,4)}, v{T} offset:{12288+16*k}")
    for k in range(4):
        lg.issue("o", f"ds_read2st64_b32 {vr(OV+2*k,2)}, v{T3} offset0:{32+4*k} offset1:{34+4*k}")
    lg.wait("ml")
    MA, MB, MALL, LA, LB = 32, 33, 34, 35, 36
    a(f"v_max3_f32 v{MA}, v{ML}, v{ML+2}, v{ML+4}")
    a(f"v_max3_f32 v{MB}, v{ML+8}, v{ML+10}, v{ML+12}")
    a(f"v_max_f32 v{MA}, v{MA}, v{ML+6}")
    a(f"v_max_f32 v{MB}, v{MB}, v{ML+14}")
    a(f"v_max_f32 v{MALL}, v{MA}, v{MB}")
    a(f"v_cndmask_b32 v{MA}, v{MALL}, v{MA}, {sMK}")
    a(f"v_cndmask_b32 v{MB}, v{MALL}, v{MB}, {sMK}")
    for w in range(8):
        a(f"v_sub_f32 v{ML+2*w}, v{ML+2*w}, v{MA if w < 4 else MB}")
    for w in range(8):
        a(f"v_exp_f32 v{ML+2*w}, v{ML+2*w}")
    lg.wait("o")
    OA = [40, 41]
    for w in range(8):
        d = OA[w >> 2]
        if w % 4 == 0:
            a(f"v_mul_f32 v{d}, v{OV+w}, v{ML+2*w}")
        else:
            a(f"v_fmac_f32 v{d}, v{OV+w}, v{ML+2*w}")
    a(f"v_fmac_f32 v{OA[0]}, s{sNM}, v{OA[1]}")
    a(f"v_cvt_pk_bf16_f32 v{X}, v{OA[0]}, v{OA[1]}")
    for w in range(8):
        L = LA if w < 4 else LB
        if w % 4 == 0:
            a(f"v_mul_f32 v{L}, v{ML+2*w}, v{ML+2*w+1}")
        else:
            a(f"v_fmac_f32 v{L}, v{ML+2*w}, v{ML+2*w+1}")
    a(f"v_fmac_f32 v{LA}, s{sNM}, v{LB}")
    a(f"v_cndmask_b32 v{T4}, v{MA}, v{MB}, vcc")
    a(f"v_cndmask_b32 v{T5}, v{LA}, v{LB}, vcc")
    for i in range(16):
        vpat2(a, SEL, ACC, X, i, ar(WA + 4 * i, 4), i == 0, BC + 4 * (i & 1), T2 + (i & 1))
    a("s_mov_b32 exec_hi, s52")
    a(f"global_store_dwordx4 v{VST}, {vr(ACC,4)}, s[{sWS}:{sWS+1}] sc1")
    a(f"s_cmp_lg_u32 s{sW}, 0")
    a("s_cbranch_scc1 L_A_noml")
    a("s_and_b32 exec_hi, s52, 1")
    a("s_mov_b32 exec_lo, 1")
    a(f"global_store_dwordx2 v{VL3}, {vr(T4,2)}, s[{sWS}:{sWS+1}] sc1")
    a.label("L_A_noml")
    signal(a, "L_A_sig", T, T2, sDBG, C3, sW, 0)
    st.mark()
    st.dump(sWS, sW)
    a("s_endpgm")


def gen_B(a, P):
    vm = Cnt(a, "vmcnt", 63)
    lg = Cnt(a, "lgkmcnt", 15)
    st = Stamps(a, P["stamps"], 64)
    sX, sCK, sWQ, sWUK, sWUV, sWO, sGW, sOUT, sDBG, sWS = 4, 8, 10, 12, 14, 16, 18, 52, 54, 56
    rA, rB, rC = 24, 28, 32
    sW, sH, sGRP, sU, sT, sT2, sOFF, sIT, sTO, sWP, sSTEP = 36, 37, 38, 39, 40, 41, 42, 43, 48, 49, 50
    sM1, sM0 = "s[44:45]", "s[46:47]"
    VL, VM_, VG, VZ = 1, 2, 3, 4
    SEL, XP, BC, ACC4 = 8, 12, 16, 24
    T, T2, T3, T4 = 28, 29, 30, 31
    VCK, VSW, VSR, VTR, VXW = 5, 6, 7, 14, 15
    WSZ = 0x400000 - 0x2000 + 256
    st.mark()
    a("s_load_dwordx2 s[4:5], s[0:1], 0")
    a("s_load_dwordx8 s[8:15], s[0:1], 48")
    a("s_load_dwordx4 s[16:19], s[0:1], 80")
    a("s_load_dwordx4 s[52:55], s[0:1], 96")
    a("s_load_dwordx2 s[56:57], s[0:1], 112")
    a("v_lshrrev_b32 v1, 6, v0")
    a(f"v_readfirstlane_b32 s{sW}, v1")
    a(f"s_and_b32 s{sT}, s2, 7")
    a(f"s_lshr_b32 s{sT2}, s2, 3")
    a(f"s_lshl_b32 s{sH}, s{sT}, 2")
    a(f"s_add_u32 s{sH}, s{sH}, s{sT2}")
    a(f"s_lshr_b32 s{sGRP}, s{sW}, 2")
    a(f"s_and_b32 s{sWP}, s{sW}, 3")
    a(f"s_lshl_b32 s{sU}, s{sH}, 1")
    a(f"s_add_u32 s{sU}, s{sU}, s{sGRP}")
    a(f"v_and_b32 v{VL}, 63, v0")
    a(f"v_and_b32 v{VM_}, 15, v0")
    a(f"v_bfe_u32 v{VG}, v0, 4, 2")
    a(f"v_mov_b32 v{VZ}, 0")
    a(f"s_lshl_b32 s3, s{sW}, 6")
    a(f"v_lshl_add_u32 v{T}, v{VG}, 4, s3")
    a(f"v_add_lshl_u32 v{T2}, v{T}, v{VM_}, 1")
    a(f"v_lshlrev_b32 v{T}, 13, v{T}")
    a(f"v_lshl_add_u32 v{VTR}, v{VM_}, 4, v{T}")
    a(f"v_add_u32 v{T}, s3, v{VG}")
    a(f"v_lshlrev_b32 v{T}, 13, v{T}")
    a(f"v_lshl_add_u32 v{T4}, v{VM_}, 4, v{T}")
    a(f"s_lshl_b32 s3, s{sWP}, 8")
    a(f"v_lshl_add_u32 v{T}, v{VM_}, 4, s3")
    a(f"v_lshl_add_u32 v{VCK}, v{VG}, 10, v{T}")
    a(f"s_lshl_b32 s{sT2}, s{sH}, 8")
    a(f"s_lshl_b32 s{sT}, s{sU}, 18")
    a(f"s_mov_b32 s{sOFF}, 0")
    a("s_waitcnt lgkmcnt(0)")
    vm.issue("x", f"global_load_ushort v{XP}, v{T2}, s[{sX}:{sX+1}]")
    vm.issue("x", f"global_load_ushort v{XP+1}, v{T2}, s[{sX}:{sX+1}] offset:1024")
    srd(a, rA, sWQ, f"s{sT2}", WSZ)
    for i in range(16):
        vm.issue(f"wq{i}", f"buffer_load_dwordx4 {ar(4*i,4)}, v{VTR}, s[{rA}:{rA+3}], s{sOFF} offen nt")
        if i < 15:
            a(f"s_add_u32 s{sOFF}, s{sOFF}, 0x2000")
    srd(a, rB, sWUK, f"s{sT2}", WSZ)
    a(f"s_mov_b32 s{sOFF}, 0")
    UK = 64
    for i in range(16):
        vm.issue(f"uk{i}", f"buffer_load_dwordx4 {vr(UK+4*i,4)}, v{T4}, s[{rB}:{rB+3}], s{sOFF} offen nt")
        if i < 15:
            a(f"s_add_u32 s{sOFF}, s{sOFF}, 0x8000")
    srd(a, rC, sCK, f"s{sT}", 0x40000)
    STG = [64, 96]

    def ckload(buf, i):
        vm.issue(f"ck{buf}", f"buffer_load_dwordx4 {ar(STG[buf]+4*i,4)}, v{VCK}, s[{rC}:{rC+3}], s{sTO} offen nt")
        a(f"s_add_u32 s{sTO}, s{sTO}, s{sSTEP}")

    a(f"s_mov_b32 s{sTO}, 0")
    a(f"s_mov_b32 s{sSTEP}, 0x1000")
    make_sel(a, SEL, VM_, T, T2, T3)
    a("s_mov_b32 s44, 0xcccccccc")
    a("s_mov_b32 s45, 0xcccccccc")
    a("s_mov_b32 s46, 0xaaaaaaaa")
    a("s_mov_b32 s47, 0xaaaaaaaa")
    a(f"v_lshrrev_b32 v{T}, 1, v{VG}")
    a(f"v_lshlrev_b32 v{T}, 9, v{T}")
    a(f"v_lshl_add_u32 v{T}, v{VM_}, 5, v{T}")
    a(f"v_and_b32 v{T2}, 1, v{VG}")
    a(f"v_lshl_add_u32 v{T}, v{T2}, 4, v{T}")
    a(f"s_lshl_b32 s3, s{sW}, 10")
    a(f"s_add_u32 s3, s3, {LDS_XCH}")
    a(f"v_add_u32 v{VXW}, s3, v{T}")
    vm.wait("x")
    a(f"v_lshl_or_b32 v{XP}, v{XP+1}, 16, v{XP}")
    for i in range(16):
        vm.wait(f"wq{i}")
        vpat2(a, SEL, ACC4, XP, i, ar(4 * i, 4), i == 0, BC + 4 * (i & 1), T + (i & 1))
        if i >= 16 - P["ck_early"]:
            pass
    lg.issue("w", f"ds_write_b128 v{VXW}, {vr(ACC4,4)}")
    for j in range(16):
        ckload(j // 8, j % 8)
    a(f"v_and_b32 v{T}, 255, v0")
    a(f"v_lshlrev_b32 v{T2}, 2, v{T}")
    a(f"v_add_u32 v{T2}, {LDS_XCH}, v{T2}")
    a(f"v_lshlrev_b32 v{T3}, 1, v{T}")
    a(f"v_add_u32 v{T3}, {LDS_XCH+8192}, v{T3}")
    a(f"v_lshlrev_b32 v{T}, 4, v{VM_}")
    a(f"v_add_u32 v{T}, {LDS_XCH+8192}, v{T}")
    lg.drain()
    a("s_barrier")
    for k in range(4):
        lg.issue("r", f"ds_read2st64_b32 {vr(32+2*k,2)}, v{T2} offset0:{8*k} offset1:{8*k+4}")
    lg.drain()
    a(f"v_pk_add_f32 {vr(32,2)}, {vr(32,2)}, {vr(34,2)}")
    a(f"v_pk_add_f32 {vr(36,2)}, {vr(36,2)}, {vr(38,2)}")
    a(f"v_pk_add_f32 {vr(32,2)}, {vr(32,2)}, {vr(36,2)}")
    a(f"v_add_f32 v32, v32, v33")
    a(f"v_cvt_pk_bf16_f32 v32, v32, v32")
    lg.issue("w", f"ds_write_b16 v{T3}, v32")
    lg.drain()
    a("s_barrier")
    QB = 16
    lg.issue("r", f"ds_read_b128 {vr(QB,4)}, v{T}")
    lg.issue("r", f"ds_read_b128 {vr(QB+4,4)}, v{T} offset:256")
    lg.drain()
    S0 = list(range(32, 48))
    S1 = list(range(48, 64))
    for i in range(16):
        vm.wait(f"uk{i}")
        for b, S in ((0, S0), (1, S1)):
            a(f"v_dot2_f32_bf16 v{S[i]}, v{UK+4*i}, v{QB+4*b}, 0")
            for r in range(1, 4):
                a(f"v_dot2_f32_bf16 v{S[i]}, v{UK+4*i+r}, v{QB+4*b+r}, v{S[i]}")
    transpose_reduce(a, S0, T, sM1, sM0)
    transpose_reduce(a, S1, T, sM1, sM0)
    a(f"v_cvt_pk_bf16_f32 v{T2}, v{S0[0]}, v{S1[0]}")
    a(f"s_lshl_b32 s3, s{sH}, 3")
    a(f"s_add_u32 s3, s3, s{sW}")
    a(f"s_lshl_b32 s3, s3, 6")
    a(f"v_lshl_add_u32 v{T}, v{VM_}, 2, v{VG}")
    a(f"v_add_lshl_u32 v{T}, v{T}, s3, 1")
    a(f"v_add_u32 v{T3}, 0x8000, v{T}")
    vm.issue("st", f"global_store_short v{T}, v{T2}, s[{sWS}:{sWS+1}] sc1")
    vm.issue("st", f"global_store_short_d16_hi v{T3}, v{T2}, s[{sWS}:{sWS+1}] sc1")
    st.mark()
    signal(a, "L_B_sig1", VZ, T, sDBG, C1, sW, 0)
    vm.p = []
    AF, QF = 32, 0
    SR, XT, PF = 32, 48, 16
    MRUN, LRUN, ALPHA = 24, 25, 26
    ACC = 64
    VUV = 27
    a(f"v_mov_b32 v{VUV}, v{VTR}")
    a(f"v_mul_u32_u24 v{T}, {STG_STRIDE}, v{VG}")
    a(f"v_lshl_add_u32 v{T}, v{VM_}, 4, v{T}")
    a(f"s_mul_i32 s3, s{sW}, {STG_WAVE}")
    a(f"v_add_u32 v{VSW}, s3, v{T}")
    a(f"v_and_b32 v{T}, 31, v{VL}")
    a(f"v_mul_u32_u24 v{T}, {STG_STRIDE}, v{T}")
    a(f"v_lshrrev_b32 v{T2}, 5, v{VL}")
    a(f"v_lshl_add_u32 v{T}, v{T2}, 4, v{T}")
    a(f"v_add_u32 v{VSR}, s3, v{T}")
    a(f"v_lshrrev_b32 v{T}, 2, v{VM_}")
    a(f"v_lshl_add_u32 v{T}, v{T2}, 2, v{T}")
    a(f"v_mul_u32_u24 v{T}, {STG_STRIDE}, v{T}")
    a(f"v_and_b32 v{T3}, 1, v{VG}")
    a(f"v_lshl_add_u32 v{T}, v{T3}, 5, v{T}")
    a(f"v_and_b32 v{T3}, 3, v{VM_}")
    a(f"v_lshl_add_u32 v{T}, v{T3}, 3, v{T}")
    a(f"v_add_u32 v{VTR}, s3, v{T}")
    VXR, VXWR = 12, 13
    a(f"s_lshl_b32 s3, s{sGRP}, 15")
    a(f"s_add_u32 s3, s3, {LDS_XCH}")
    a(f"v_lshl_add_u32 v{VXR}, v{VL}, 4, s3")
    a(f"s_lshl_b32 s3, s{sWP}, 12")
    a(f"v_add_u32 v{VXWR}, s3, v{VXR}")
    a(f"v_and_b32 v{T}, 31, v{VL}")
    a(f"v_lshlrev_b32 v{T}, 10, v{T}")
    a(f"v_lshl_add_u32 v{T}, v{T2}, 4, v{T}")
    a(f"s_lshr_b32 s{sT}, s{sH}, 4")
    a(f"s_lshl_b32 s{sT}, s{sT}, 15")
    a(f"s_lshl_b32 s3, s{sWP}, 8")
    a(f"s_add_u32 s3, s3, s{sT}")
    a(f"v_add_u32 v{T4}, s3, v{T}")
    for r in range(64):
        a(f"v_mov_b32 v{ACC+r}, 0")
    a(f"v_mov_b32 v{MRUN}, {NEGINF}")
    a(f"v_mov_b32 v{LRUN}, 0")
    a(f"s_mov_b32 s{sIT}, 0")
    poll(a, "L_B_p1", VZ, T, sDBG, C1, NB, sW, sT, 2)
    for s in range(8):
        vm.issue("qf", f"global_load_dwordx4 {ar(QF+4*s,4)}, v{T4}, s[{sWS}:{sWS+1}] offset:{32*s} sc1")
    vm.drain()
    st.mark()
    vm.p = ["ck0"] * 8 + ["ck1"] * 8
    entry = list(vm.p)
    if P["phase"]:
        a(f"s_cmp_eq_u32 s{sGRP}, 0")
        a("s_cbranch_scc1 L_B_loop")
        a("s_barrier")
    a.label("L_B_loop")
    a(f"s_cmp_lg_u32 s{sIT}, 3")
    a("s_cbranch_scc1 L_B_nosw")
    a(f"s_lshl_b32 s{sT2}, s{sH}, 8")
    srd(a, rC, sWUV, f"s{sT2}", WSZ)
    a(f"v_swap_b32 v{VCK}, v{VUV}")
    a(f"s_mov_b32 s{sTO}, 0")
    a(f"s_mov_b32 s{sSTEP}, 0x2000")
    a.label("L_B_nosw")
    def pm(k):
        if P.get("bprof") and p == 0:
            a(f"s_memtime s[{64+2*k}:{65+2*k}]")
            a("s_waitcnt lgkmcnt(0)")
            lg.p = []

    for p in range(2):
        vm.wait(f"ck{p}")
        pm(0)
        for i in range(8):
            lg.issue("sw", f"ds_write_b128 v{VSW}, {ar(STG[p]+4*i,4)} offset:{i*4*STG_STRIDE}")
        for s in range(2 if P.get("no_af") else 8):
            lg.issue(f"af{s}", f"ds_read_b128 {ar(AF+4*s,4)}, v{VSR} offset:{32*s}")
        lg.wait("sw")
        pm(1)
        for i in range(8):
            ckload(p, i)
        if P.get("no_ld"):
            a(f"s_mov_b32 s{rC+2}, 0")
        for s in range(8):
            lg.wait(f"af{s}")
            c = "0" if s == 0 else vr(SR, 16)
            a(f"v_mfma_f32_32x32x16_bf16 {vr(SR,16)}, {ar(AF+4*s,4)}, {ar(QF+4*s,4)}, {c}")
        for q in range(4):
            lg.issue("xw", f"ds_write_b128 v{VXWR}, {vr(SR+4*q,4)} offset:{p*16384+q*1024}")
        lg.drain()
        pm(2)
        a("s_barrier")
        pm(3)
        for q in range(4):
            for w in range(2 if P.get("x_half") else 4):
                dst = SR + 4 * q if w == 0 else XT + 4 * (w - 1) + 0
                lg.issue(f"x{w}", f"ds_read_b128 {vr(dst,4)}, v{VXR} offset:{p*16384+w*4096+q*1024}")
            lg.wait("x1")
            for k in (0, 2):
                a(f"v_pk_add_f32 {vr(SR+4*q+k,2)}, {vr(SR+4*q+k,2)}, {vr(XT+k,2)}")
            lg.wait("x3")
            for k in (0, 2):
                a(f"v_pk_add_f32 {vr(XT+4+k,2)}, {vr(XT+4+k,2)}, {vr(XT+8+k,2)}")
            for k in (0, 2):
                a(f"v_pk_add_f32 {vr(SR+4*q+k,2)}, {vr(SR+4*q+k,2)}, {vr(XT+4+k,2)}")
        for cb in range(4):
            for t in range(2):
                for sec in range(2):
                    lg.issue(f"tr{cb}{t}", f"ds_read_b64_tr_b16 {ar(AF+8*cb+4*t+2*sec,2)}, v{VTR} offset:{(16*t+8*sec)*STG_STRIDE+cb*64}")
        pm(4)
        for rnd in range(0 if P.get("no_soft") else 2):
            for k in range(8):
                a(f"v_cvt_pk_bf16_f32 v{XT+k}, v{SR+2*k}, v{SR+2*k+1}")
            mul = SCALE if rnd == 0 else LOG2E
            for k in range(8):
                a(f"v_lshlrev_b32 v{SR+2*k}, 16, v{XT+k}")
                a(f"v_and_b32 v{SR+2*k+1}, 0xffff0000, v{XT+k}")
            for k in range(16):
                a(f"v_mul_f32 v{SR+k}, {mul}, v{SR+k}")
        a(f"v_max3_f32 v{T}, v{SR}, v{SR+1}, v{MRUN}")
        for k in range(2, 16, 2):
            a(f"v_max3_f32 v{T}, v{SR+k}, v{SR+k+1}, v{T}")
        a(f"v_mov_b32 v{T2}, v{T}")
        a(f"v_permlane32_swap_b32 v{T}, v{T2}")
        a(f"v_max_f32 v{T}, v{T}, v{T2}")
        a(f"v_sub_f32 v{ALPHA}, v{MRUN}, v{T}")
        a(f"v_exp_f32 v{ALPHA}, v{ALPHA}")
        a(f"v_mov_b32 v{MRUN}, v{T}")
        for k in range(16):
            a(f"v_sub_f32 v{SR+k}, v{SR+k}, v{T}")
        for k in range(16):
            a(f"v_exp_f32 v{SR+k}, v{SR+k}")
        a(f"v_mul_f32 v{LRUN}, v{LRUN}, v{ALPHA}")
        for k in range(8):
            a(f"v_cvt_pk_bf16_f32 v{PF+k}, v{SR+2*k}, v{SR+2*k+1}")
        for k in range(0, 0 if P.get("no_soft") else 64, 2):
            a(f"v_pk_mul_f32 {vr(ACC+k,2)}, {vr(ACC+k,2)}, {vr(ALPHA,2)} op_sel_hi:[1,0]")
        for k in range(0, 8, 2):
            a(f"v_pk_add_f32 {vr(SR+k,2)}, {vr(SR+k,2)}, {vr(SR+8+k,2)}")
        for k in range(0, 4, 2):
            a(f"v_pk_add_f32 {vr(SR+k,2)}, {vr(SR+k,2)}, {vr(SR+4+k,2)}")
        a(f"v_pk_add_f32 {vr(SR,2)}, {vr(SR,2)}, {vr(SR+2,2)}")
        a(f"v_add_f32 v{LRUN}, v{LRUN}, v{SR}")
        a(f"v_add_f32 v{LRUN}, v{LRUN}, v{SR+1}")
        pm(5)
        if P["phase"]:
            a("s_barrier")
        for cb in range(4):
            for t in range(2):
                lg.wait(f"tr{cb}{t}")
                a(f"v_mfma_f32_32x32x16_bf16 {vr(ACC+16*cb,16)}, {ar(AF+8*cb+4*t,4)}, {vr(PF+4*t,4)}, {vr(ACC+16*cb,16)}")
        if P.get("bprof") and p == 0:
            a(f"v_mov_b32 v{T}, v{ACC+63}")
        pm(6)
    assert vm.p == entry and lg.p == []
    a(f"s_add_u32 s{sIT}, s{sIT}, 1")
    a(f"s_cmp_lt_u32 s{sIT}, 4")
    a("s_cbranch_scc1 L_B_loop")
    st.mark()
    UV = 64
    a(f"s_lshl_b32 s{sT2}, s{sH}, 17")
    a(f"s_lshl_b32 s3, s{sGRP}, 16")
    a(f"s_add_u32 s{sT2}, s{sT2}, s3")
    srd(a, rA, sWO, f"s{sT2}", 0x10000)
    a(f"s_lshl_b32 s3, s{sWP}, 8")
    a(f"v_lshl_add_u32 v{T4}, v{VM_}, 4, s3")
    a(f"v_lshl_add_u32 v{T4}, v{VG}, 14, v{T4}")

    def woloads():
        a(f"s_mov_b32 s{sOFF}, 0")
        for j in range(16):
            a(f"buffer_load_dwordx4 {ar(4*j,4)}, v{T4}, s[{rA}:{rA+3}], s{sOFF} offen offset:{(j%4)*1024} nt")
            if j % 4 == 3 and j < 15:
                a(f"s_add_u32 s{sOFF}, s{sOFF}, 0x1000")

    a(f"s_cmp_lg_u32 s{sW}, 0")
    a("s_cbranch_scc1 L_B_wo0")
    woloads()
    a.label("L_B_wo0")
    a(f"v_mov_b32 v{T2}, v{LRUN}")
    a(f"v_permlane32_swap_b32 v{LRUN}, v{T2}")
    a(f"v_add_f32 v{LRUN}, v{LRUN}, v{T2}")
    a(f"v_lshrrev_b32 v{T2}, 5, v{VL}")
    a(f"v_lshlrev_b32 v{T2}, 3, v{T2}")
    a(f"v_sub_u32 v{T3}, v{VSR}, v{T2}")
    for cb in range(4):
        for q in range(4):
            r = ACC + 16 * cb + 4 * q
            d = SR + 2 * ((4 * cb + q) % 8)
            a(f"v_cvt_pk_bf16_f32 v{d}, v{r}, v{r+1}")
            a(f"v_cvt_pk_bf16_f32 v{d+1}, v{r+2}, v{r+3}")
            lg.issue("tw", f"ds_write_b64 v{T3}, {vr(d,2)} offset:{cb*64+q*16}")
    for i in range(8):
        lg.issue(f"tr{i}", f"ds_read_b128 {vr(ACC+4*i,4)}, v{VSW} offset:{i*4*STG_STRIDE}")
    a(f"s_lshl_b32 s{sT}, s{sU}, 15")
    a(f"s_add_u32 s{sT}, s{sT}, {WS_BPART}")
    srd(a, rC, sWS, f"s{sT}", 0x8000)
    a(f"v_and_b32 v{T}, 31, v{VL}")
    a(f"s_lshl_b32 s3, s{sU}, 8")
    a(f"s_add_u32 s3, s3, {WS_BML}")
    a(f"v_lshl_add_u32 v{T}, v{T}, 3, s3")
    a(f"global_store_dwordx2 v{T}, {vr(MRUN,2)}, s[{sWS}:{sWS+1}] sc1")
    a(f"s_mov_b32 s{sOFF}, 0")
    for i in range(8):
        lg.wait(f"tr{i}")
        a(f"buffer_store_dwordx4 {vr(ACC+4*i,4)}, v{VUV}, s[{rC}:{rC+3}], s{sOFF} offen sc1")
        if i < 7:
            a(f"s_add_u32 s{sOFF}, s{sOFF}, 0x1000")
    if P["phase"]:
        a(f"s_cmp_lg_u32 s{sGRP}, 0")
        a("s_cbranch_scc1 L_B_ph1")
        a("s_barrier")
        a.label("L_B_ph1")
    signal(a, "L_B_sig2", VZ, T2, sDBG, C2, sW, 0, keep=0)
    vm.p = []
    a(f"s_cmp_eq_u32 s{sW}, 0")
    a("s_cbranch_scc1 L_B_wo1")
    woloads()
    a.label("L_B_wo1")
    st.mark()
    a(f"s_lshl_b32 s{sT}, s{sW}, 18")
    a(f"s_lshl_b32 s3, s{sH}, 10")
    a(f"s_add_u32 s{sT}, s{sT}, s3")
    a(f"s_add_u32 s{sT}, s{sT}, {WS_BPART}")
    srd(a, rC, sWS, f"s{sT}", 0x40000)
    a(f"v_lshlrev_b32 v{VCK}, 4, v{VL}")
    a(f"v_and_b32 v{T3}, 31, v{VL}")
    a(f"s_lshl_b32 s3, s{sGRP}, 13")
    a(f"s_lshl_b32 s{sT}, s{sH}, 3")
    a(f"s_add_u32 s{sT}, s{sT}, {WS_BML}")
    a(f"s_add_u32 s3, s3, s{sT}")
    a(f"v_lshl_add_u32 v{VSW}, v{T3}, 8, s3")
    a(f"s_lshl_b32 s3, s{sW}, 11")
    a(f"s_add_u32 s3, s3, {LDS_XCH}")
    a(f"v_lshl_add_u32 v{VTR}, v{VL}, 5, s3")
    poll(a, "L_B_p2", VZ, T, sDBG, C2, NB, sW, sT, 2)
    st.mark()
    PR, OML = 64, 12
    vm.issue("oml", f"global_load_dwordx2 {vr(OML,2)}, v{VSW}, s[{sWS}:{sWS+1}] sc1")
    a(f"s_mov_b32 s{sOFF}, 0")
    for i in range(8):
        vm.issue(f"pr{i}", f"buffer_load_dwordx4 {vr(PR+4*i,4)}, v{VCK}, s[{rC}:{rC+3}], s{sOFF} offen sc1")
        if i < 7:
            a(f"s_add_u32 s{sOFF}, s{sOFF}, 0x8000")
    vm.wait("oml")
    MM, TT = 6, 7
    a(f"v_mov_b32 v{MM}, v{OML}")
    for c in ("row_ror:8", "row_ror:4", "row_ror:2", "row_ror:1"):
        a(f"v_max_f32_dpp v{MM}, v{MM}, v{MM} {dpp(c)}")
    a(f"v_mov_b32 v{TT}, v{MM}")
    a(f"v_permlane16_swap_b32 v{MM}, v{TT}")
    a(f"v_max_f32 v{MM}, v{MM}, v{TT}")
    a(f"v_sub_f32 v{OML}, v{OML}, v{MM}")
    a(f"v_exp_f32 v{OML}, v{OML}")
    a(f"v_mul_f32 v{MM}, v{OML}, v{OML+1}")
    for c in ("row_ror:8", "row_ror:4", "row_ror:2", "row_ror:1"):
        a(f"v_add_f32_dpp v{MM}, v{MM}, v{MM} {dpp(c)}")
    a(f"v_mov_b32 v{TT}, v{MM}")
    a(f"v_permlane16_swap_b32 v{MM}, v{TT}")
    a(f"v_add_f32 v{MM}, v{MM}, v{TT}")
    a(f"v_rcp_f32 v{MM}, v{MM}")
    a(f"v_mul_f32 v{OML}, v{OML}, v{MM}")
    a(f"s_lshl_b32 s3, s{sWP}, 3")
    SWT = 84
    for i in range(8):
        a(f"v_readlane_b32 s{SWT+i}, v{OML}, s3")
        if i < 7:
            a("s_add_u32 s3, s3, 1")
    OA = 32
    for i in range(8):
        vm.wait(f"pr{i}")
        for k in range(4):
            a(f"v_lshlrev_b32 v{MM}, 16, v{PR+4*i+k}")
            a(f"v_and_b32 v{TT}, 0xffff0000, v{PR+4*i+k}")
            if i == 0:
                a(f"v_mul_f32 v{OA+2*k}, s{SWT}, v{MM}")
                a(f"v_mul_f32 v{OA+2*k+1}, s{SWT}, v{TT}")
            else:
                a(f"v_fmac_f32 v{OA+2*k}, s{SWT+i}, v{MM}")
                a(f"v_fmac_f32 v{OA+2*k+1}, s{SWT+i}, v{TT}")
    lg.issue("w", f"ds_write_b128 v{VTR}, {vr(OA,4)}")
    lg.issue("w", f"ds_write_b128 v{VTR}, {vr(OA+4,4)} offset:16")
    a(f"v_lshl_add_u32 v{T}, v{VG}, 4, v{VM_}")
    a(f"s_lshl_b32 s3, s{sW}, 8")
    a(f"s_add_u32 s3, s3, {LDS_XCH}")
    a(f"v_lshl_add_u32 v{T}, v{T}, 2, s3")
    lg.drain()
    a("s_barrier")
    R = 40
    for k in range(4):
        lg.issue("r", f"ds_read2st64_b32 {vr(R+2*k,2)}, v{T} offset0:{16*k} offset1:{16*k+8}")
    lg.drain()
    for b in range(2):
        a(f"v_pk_add_f32 {vr(R+4*b,2)}, {vr(R+4*b,2)}, {vr(R+4*b+2,2)}")
        a(f"v_add_f32 v{R+4*b}, v{R+4*b}, v{R+4*b+1}")
    a(f"v_cvt_pk_bf16_f32 v{XP}, v{R}, v{R+4}")
    for i in range(16):
        vpat2(a, SEL, ACC4, XP, i, ar(UV + 4 * i, 4), i == 0, BC + 4 * (i & 1), T + (i & 1))
    lg.issue("w", f"ds_write_b128 v{VXW}, {vr(ACC4,4)} offset:16384")
    a(f"v_lshl_add_u32 v{T}, v{VG}, 4, v{VM_}")
    a(f"s_lshl_b32 s3, s{sGRP}, 8")
    a(f"s_add_u32 s3, s3, {LDS_XCH+16384}")
    a(f"v_lshl_add_u32 v{T}, v{T}, 2, s3")
    lg.drain()
    a("s_barrier")
    for w in range(8):
        lg.issue("r", f"ds_read2st64_b32 {vr(R+2*w,2)}, v{T} offset0:{4*w} offset1:{4*w+2}")
    lg.drain()
    for k in range(0, 8, 2):
        a(f"v_pk_add_f32 {vr(R+k,2)}, {vr(R+k,2)}, {vr(R+8+k,2)}")
    for k in range(0, 4, 2):
        a(f"v_pk_add_f32 {vr(R+k,2)}, {vr(R+k,2)}, {vr(R+4+k,2)}")
    a(f"v_pk_add_f32 {vr(R,2)}, {vr(R,2)}, {vr(R+2,2)}")
    a(f"v_cvt_pk_bf16_f32 v{XP}, v{R}, v{R+1}")
    for i in range(16):
        vpat2(a, SEL, ACC4, XP, i, ar(4 * i, 4), i == 0, BC + 4 * (i & 1), T + (i & 1))
    a(f"v_lshrrev_b32 v{T3}, 1, v{VG}")
    a(f"v_lshlrev_b32 v{T3}, 11, v{T3}")
    a(f"v_lshl_add_u32 v{T3}, v{VM_}, 5, v{T3}")
    a(f"v_and_b32 v{T4}, 1, v{VG}")
    a(f"v_lshl_add_u32 v{T3}, v{T4}, 4, v{T3}")
    a(f"s_lshl_b32 s3, s{sU}, 12")
    a(f"s_lshl_b32 s{sT}, s{sWP}, 9")
    a(f"s_add_u32 s3, s3, s{sT}")
    a(f"s_add_u32 s3, s3, {WS_BOUT}")
    a(f"v_add_u32 v{T3}, s3, v{T3}")
    a(f"global_store_dwordx4 v{T3}, {vr(ACC4,4)}, s[{sWS}:{sWS+1}] sc1")
    signal(a, "L_B_sig3", VZ, T, sDBG, C3, sW, 0)
    vm.p = []
    if st.on:
        st.n = 5
        st.mark()
    a(f"s_cmp_lg_u32 s{sGRP}, 0")
    a("s_cbranch_scc1 L_F_end")
    sB, sCB = 38, 39
    VA, VA2, VB, VB2, VML, VX = 5, 6, 7, 8, 9, 10
    ML, AP, BP, XW, G = 12, 64, 36, 44, 46
    T, T2 = 47, 48
    a(f"s_lshr_b32 s{sB}, s{sH}, 4")
    a(f"s_and_b32 s{sCB}, s{sH}, 15")
    a(f"v_lshlrev_b32 v{T}, 2, v0")
    a(f"s_lshl_b32 s{sT}, s{sB}, 10")
    a(f"v_add_u32 v{VX}, s{sT}, v{T}")
    vm.issue("x", f"global_load_dword v{XW}, v{VX}, s[{sX}:{sX+1}]")
    vm.issue("x", f"global_load_dword v{XW+1}, v{T}, s[{sGW}:{sGW+1}]")
    a(f"v_lshrrev_b32 v{T}, 3, v0")
    a(f"v_and_b32 v{T2}, 7, v0")
    a(f"v_lshlrev_b32 v{T2}, 4, v{T2}")
    a(f"v_lshl_add_u32 v{VA}, v{T}, 14, v{T2}")
    a(f"v_lshl_add_u32 v{T2}, v{T}, 13, v{T2}")
    a(f"s_lshl_b32 s3, s{sCB}, 7")
    a(f"s_lshl_b32 s{sT}, s{sB}, 19")
    a(f"s_add_u32 s{sT}, s{sT}, s3")
    a(f"s_add_u32 s{sT}, s{sT}, {WS_APART + 0x1000}")
    a(f"v_add_u32 v{VA}, s{sT}, v{VA}")
    a(f"v_add_u32 v{VA2}, 0x2000, v{VA}")
    a(f"s_lshl_b32 s{sT}, s{sB}, 11")
    a(f"s_add_u32 s{sT}, s{sT}, s3")
    a(f"s_add_u32 s{sT}, s{sT}, {WS_BOUT}")
    a(f"v_add_u32 v{VB}, s{sT}, v{T2}")
    a(f"v_add_u32 v{VB2}, 0x1000, v{VB}")
    a(f"s_lshl_b32 s{sT}, s{sB}, 10")
    a(f"s_add_u32 s{sT}, s{sT}, {WS_AML}")
    a(f"v_lshl_add_u32 v{VML}, v{T}, 5, s{sT}")
    vm.wait("x")
    a(f"v_lshlrev_b32 v{T}, 16, v{XW}")
    a(f"v_lshlrev_b32 v{T2}, 16, v{XW+1}")
    a(f"v_and_b32 v{XW}, 0xffff0000, v{XW}")
    a(f"v_and_b32 v{XW+1}, 0xffff0000, v{XW+1}")
    a(f"v_mul_f32 v{T}, v{T}, v{T2}")
    a(f"v_mul_f32 v{T2}, v{XW}, v{XW+1}")
    a(f"v_cvt_pk_bf16_f32 v{T}, v{T}, v{T2}")
    a(f"v_lshlrev_b32 v{T2}, 16, v{T}")
    a(f"v_and_b32 v{T}, 0xffff0000, v{T}")
    a(f"v_add_f32 v{G}, v{T}, v{T2}")
    wave_reduce(a, "v_add_f32", G, T)
    a(f"s_lshl_b32 s3, s{sW}, 2")
    a(f"v_mov_b32 v{T}, s3")
    lg.issue("w", f"ds_write_b32 v{T}, v{G} offset:2048")
    lg.drain()
    poll(a, "L_B_p3", VZ, T, sDBG, C3, NB if P.get("skipA") else NA + NB, sW, sT, P["sleep3"])
    ws = f"s[{sWS}:{sWS+1}]"
    vm.issue("ml", f"global_load_dwordx4 {vr(ML,4)}, v{VML}, {ws} sc1")
    vm.issue("ml", f"global_load_dwordx4 {vr(ML+4,4)}, v{VML}, {ws} offset:16 sc1")
    for sp in range(4):
        for hf in range(2):
            vm.issue(f"a{sp}", f"global_load_dwordx4 {vr(AP+8*sp+4*hf,4)}, v{VA if sp < 2 else VA2}, {ws} offset:{(sp&1)*4096+hf*2048-4096} sc1")
    vm.issue("b", f"global_load_dwordx4 {vr(BP,4)}, v{VB}, {ws} sc1")
    vm.issue("b", f"global_load_dwordx4 {vr(BP+4,4)}, v{VB2}, {ws} sc1")
    GG = 50
    lg.issue("g", f"ds_read_b128 {vr(GG,4)}, v{VZ} offset:2048")
    lg.drain()
    a(f"v_pk_add_f32 {vr(GG,2)}, {vr(GG,2)}, {vr(GG+2,2)}")
    a(f"v_add_f32 v{G}, v{GG}, v{GG+1}")
    bf16r(a, G)
    a(f"v_mul_f32 v{G}, 0xbfb8aa3b, v{G}")
    a(f"v_exp_f32 v{G}, v{G}")
    a(f"v_add_f32 v{G}, 1.0, v{G}")
    a(f"v_rcp_f32 v{G}, v{G}")
    bf16r(a, G)
    a(f"v_sub_f32 v{GG}, 1.0, v{G}")
    bf16r(a, GG)
    a(f"v_and_b32 v{T}, 7, v0")
    a(f"v_lshrrev_b32 v{T2}, 4, v0")
    a(f"v_lshl_add_u32 v{T}, v{T}, 2, v{T2}")
    a(f"s_lshl_b32 s3, s{sH}, 6")
    a(f"v_lshl_add_u32 v{VX}, v{T}, 1, s3")
    vm.wait("ml")
    a(f"v_max3_f32 v{T}, v{ML}, v{ML+2}, v{ML+4}")
    a(f"v_max_f32 v{T}, v{T}, v{ML+6}")
    for sp in range(4):
        a(f"v_sub_f32 v{ML+2*sp}, v{ML+2*sp}, v{T}")
    for sp in range(4):
        a(f"v_exp_f32 v{ML+2*sp}, v{ML+2*sp}")
    a(f"v_mul_f32 v{T}, v{ML}, v{ML+1}")
    for sp in range(1, 4):
        a(f"v_fmac_f32 v{T}, v{ML+2*sp}, v{ML+2*sp+1}")
    a(f"v_rcp_f32 v{T}, v{T}")
    for sp in range(4):
        a(f"v_mul_f32 v{ML+2*sp}, v{ML+2*sp}, v{T}")
    vm.wait("a0")
    for k in (0, 2):
        a(f"v_pk_add_f32 {vr(AP+k,2)}, {vr(AP+k,2)}, {vr(AP+4+k,2)}")
    for k in range(4):
        a(f"v_mul_f32 v{AP+k}, v{AP+k}, v{ML}")
    for sp in range(1, 4):
        vm.wait(f"a{sp}")
        for k in (0, 2):
            a(f"v_pk_add_f32 {vr(AP+8*sp+k,2)}, {vr(AP+8*sp+k,2)}, {vr(AP+8*sp+4+k,2)}")
        for k in range(4):
            a(f"v_fmac_f32 v{AP+k}, v{AP+8*sp+k}, v{ML+2*sp}")
    vm.wait("b")
    for k in range(4):
        a(f"v_add_f32 v{AP+4+k}, v{BP+k}, v{BP+4+k}")
    V = [AP + k for k in range(8)]
    for k in range(8):
        a(f"v_add_f32_dpp v{V[k]}, v{V[k]}, v{V[k]} {dpp('row_ror:8')}")
    for k in range(0, 8, 2):
        a(f"v_permlane16_swap_b32 v{V[k]}, v{V[k+1]}")
    for k in range(0, 8, 2):
        a(f"v_add_f32 v{V[k]}, v{V[k]}, v{V[k+1]}")
    for k in range(0, 8, 4):
        a(f"v_permlane32_swap_b32 v{V[k]}, v{V[k+2]}")
    a(f"v_add_f32 v{V[0]}, v{V[0]}, v{V[2]}")
    a(f"v_add_f32 v{V[1]}, v{V[4]}, v{V[6]}")
    a(f"v_lshlrev_b32 v{T}, 3, v0")
    lg.issue("w", f"ds_write_b64 v{T}, {vr(V[0],2)}")
    lg.drain()
    a("s_barrier")
    a(f"s_cmp_lg_u32 s{sW}, 0")
    a("s_cbranch_scc1 L_F_end")
    for w in range(4):
        lg.issue("r", f"ds_read_b64 {vr(AP+2*w,2)}, v{T} offset:{512*w}")
    lg.drain()
    a(f"v_pk_add_f32 {vr(AP,2)}, {vr(AP,2)}, {vr(AP+2,2)}")
    a(f"v_pk_add_f32 {vr(AP+4,2)}, {vr(AP+4,2)}, {vr(AP+6,2)}")
    a(f"v_pk_add_f32 {vr(AP,2)}, {vr(AP,2)}, {vr(AP+4,2)}")
    a(f"v_cvt_pk_bf16_f32 v{T}, v{AP}, v{AP+1}")
    a(f"v_lshlrev_b32 v{AP}, 16, v{T}")
    a(f"v_and_b32 v{AP+1}, 0xffff0000, v{T}")
    a(f"v_mul_f32 v{AP}, v{AP}, v{G}")
    a(f"v_mul_f32 v{AP+1}, v{AP+1}, v{GG}")
    a(f"v_cvt_pk_bf16_f32 v{T}, v{AP}, v{AP+1}")
    a(f"v_lshlrev_b32 v{AP}, 16, v{T}")
    a(f"v_and_b32 v{AP+1}, 0xffff0000, v{T}")
    a(f"v_add_f32 v{AP}, v{AP}, v{AP+1}")
    a(f"v_cvt_pk_bf16_f32 v{AP}, v{AP}, v{AP}")
    a("s_mov_b32 exec_lo, 0x00ff00ff")
    a("s_mov_b32 exec_hi, 0x00ff00ff")
    a(f"global_store_short v{VX}, v{AP}, s[{sOUT}:{sOUT+1}]")
    a.label("L_F_end")
    st.mark()
    st.dump(sWS, sW)
    a("s_endpgm")


def build(P):
    a = Asm()
    a.raw(f"; @launch grid=(256,1,1) block=(512,1,1) lds={LDS_TOTAL}")
    a.raw('.amdgcn_target "amdgcn-amd-amdhsa--gfx950"\n.text')
    a.raw(f".globl {NAME}\n.p2align 8\n.type {NAME},@function\n{NAME}:")
    a(f"s_cmp_lt_u32 s2, {NB}")
    a("s_cbranch_scc1 L_B_entry")
    a(f"s_cmp_lt_u32 s2, {NA+NB}")
    a("s_cbranch_scc1 L_A_entry")
    a("s_endpgm")
    a.label("L_A_entry")
    if P.get("skipA"):
        a("s_endpgm")
    gen_A(a, P)
    a.raw(".p2align 6")
    a.label("L_B_entry")
    if P.get("skipB"):
        a("s_endpgm")
    gen_B(a, P)
    a.raw('.section .rodata,"a"')
    a.raw(f""".p2align 6
.amdhsa_kernel {NAME}
  .amdhsa_next_free_vgpr 256
  .amdhsa_next_free_sgpr 102
  .amdhsa_accum_offset 128
  .amdhsa_group_segment_fixed_size 0
  .amdhsa_kernarg_size 120
  .amdhsa_user_sgpr_count 2
  .amdhsa_user_sgpr_kernarg_segment_ptr 1
  .amdhsa_system_sgpr_workgroup_id_x 1
.end_amdhsa_kernel""")
    return a.text()


DEFAULT = dict(D=3, D0=32, w_nt=1, k_first=4, stamps=0, wo_start=4, wo_every=2, sleep3=4, ck_early=0, phase=1)

if __name__ == "__main__":
    out = sys.argv[1]
    P = dict(DEFAULT)
    for kv in sys.argv[2:]:
        k, v = kv.split("=")
        P[k] = int(v)
    open(out, "w").write(build(P))
```

```python
import sys
sys.path.insert(0, "dev")
from asmlib import *
from gen import (Cnt, dpp, transpose_reduce, tr_step1, wave_reduce, bf16r, srd, LOG2E, SCALE, NEGINF,
                 WS_QABS, WS_BML, WS_AML, WS_BPART, WS_APART, WS_STAMP, STG_STRIDE, STG_WAVE)
WS_BOUT = 0x600000

NAME = "gated_mix__mha_block_cached__compressed_kv_cla__decode_kernel"
LDS_XCH = 8 * STG_WAVE
LDS_TOTAL = LDS_XCH + 65536
C1, C2, C3 = 0, 64, 128
NB, NA = 32, 224


class Stamps:
    def __init__(self, a, on, sbase):
        self.a, self.on, self.sbase, self.n = a, on, sbase, 0

    def mark(self):
        if self.on == 1:
            assert self.n < 7
            self.a(f"s_memrealtime s[{self.sbase + 2*self.n}:{self.sbase + 2*self.n + 1}]")
            self.a("s_waitcnt lgkmcnt(0)")
            self.n += 1

    def dump(self, wsreg, wave_s):
        if not self.on:
            return
        a = self.a
        a("s_getreg_b32 s3, hwreg(HW_REG_HW_ID)")
        a(f"s_mov_b32 s{self.sbase+14}, s3")
        a("s_getreg_b32 s3, hwreg(HW_REG_XCC_ID)")
        a(f"s_mov_b32 s{self.sbase+15}, s3")
        a("s_mov_b64 exec, -1")
        for i in range(16):
            a(f"v_mov_b32 v{i+4}, s{self.sbase+i}")
        a("s_lshl_b32 s3, s2, 3")
        a(f"s_add_u32 s3, s3, s{wave_s}")
        a("s_lshl_b32 s3, s3, 6")
        a(f"s_add_u32 s3, s3, {WS_STAMP}")
        a("v_mov_b32 v1, s3")
        a("s_mov_b64 exec, 1")
        for i in range(4):
            a(f"global_store_dwordx4 v1, v[{4+4*i}:{7+4*i}], s[{wsreg}:{wsreg+1}] offset:{16*i}")


def make_sel(a, SEL, VM_, T, T2, T3):
    a(f"v_mov_b32 v{T}, 0x0100")
    a(f"v_mov_b32 v{T2}, 0x0302")
    a(f"v_cmp_gt_u32 vcc, 8, v{VM_}")
    a(f"v_cndmask_b32 v{T}, v{T2}, v{T}, vcc")
    a(f"v_lshlrev_b32 v{T2}, 16, v{T}")
    a(f"v_or_b32 v{T2}, 0x0c0c, v{T2}")
    a(f"v_or_b32 v{T}, 0x0c0c0000, v{T}")
    a(f"v_and_b32 v{T3}, 1, v{VM_}")
    a(f"v_cmp_eq_u32 vcc, 1, v{T3}")
    a(f"v_cndmask_b32 v{T}, v{T}, v{T2}, vcc")
    a(f"v_bfe_u32 v{T2}, v{VM_}, 1, 2")
    a(f"v_mov_b32 v{T3}, 0x0c0c0c0c")
    for r in range(4):
        a(f"v_cmp_eq_u32 vcc, {r}, v{T2}")
        a(f"v_cndmask_b32 v{SEL+r}, v{T3}, v{T}, vcc")


def vpat2(a, SEL, acc, src, i, data, first, bc, t):
    a(f"v_mov_b32_dpp v{t}, v{src} {dpp(f'row_newbcast:{i}')}")
    for r in range(4):
        a(f"v_perm_b32 v{bc+r}, v{t}, v{t}, v{SEL+r}")
    c = "0" if first else vr(acc, 4)
    a(f"v_mfma_f32_16x16x32_bf16 {vr(acc,4)}, {vr(bc,4)}, {data}, {c}")


def poll(a, name, vaddr, vt, sdbg, off, target, sW, sT, sleep=4):
    a(f"s_cmp_lg_u32 s{sW}, 0")
    a(f"s_cbranch_scc1 {name}_done")
    a(f"s_mov_b32 s{sT}, 0")
    a.label(f"{name}_loop")
    a(f"global_load_dword v{vt}, v{vaddr}, s[{sdbg}:{sdbg+1}] offset:{off} sc1")
    a("s_waitcnt vmcnt(0)")
    a(f"v_readfirstlane_b32 s3, v{vt}")
    a(f"s_cmp_ge_u32 s3, {target}")
    a(f"s_cbranch_scc1 {name}_done")
    a(f"s_sleep {sleep}")
    a(f"s_add_u32 s{sT}, s{sT}, 1")
    a(f"s_cmp_lt_u32 s{sT}, 0x8000")
    a(f"s_cbranch_scc1 {name}_loop")
    a.label(f"{name}_done")
    a("s_barrier")


def signal(a, name, vzero, vt, sdbg, off, sW, wave, keep=0):
    a(f"s_waitcnt vmcnt({keep})")
    a("s_barrier")
    a(f"s_cmp_lg_u32 s{sW}, {wave}")
    a(f"s_cbranch_scc1 {name}_skip")
    a("s_mov_b64 exec, 1")
    a(f"v_mov_b32 v{vt}, 1")
    a(f"global_atomic_add v{vzero}, v{vt}, s[{sdbg}:{sdbg+1}] offset:{off} sc1")
    a("s_mov_b64 exec, -1")
    a.label(f"{name}_skip")


def gen_A(a, P):
    D, D0 = P["D"], P["D0"]
    WN = " nt" if P["w_nt"] else ""
    vm = Cnt(a, "vmcnt", 63)
    lg = Cnt(a, "lgkmcnt", 15)
    st = Stamps(a, P["stamps"], 64)
    VL1, VM_, VG, VO = 1, 2, 3, 4
    MASK, Q, BC, ACC = 8, 12, 16, 24
    MRUN, LRUN, PP, T = 28, 29, 30, 31
    S = list(range(32, 48))
    X, SEL, VW, T2, T3, T4, T5, VNI = 48, 52, 56, 58, 59, 60, 61, 57
    VL3, VST = 62, 63
    RING = 64
    WA = 64
    sX, sK, sV, sWQ, sWO, sDBG, sWS = 4, 6, 8, 10, 12, 48, 50
    rK, rV, rW = 16, 20, 24
    sW, sH, sB, sJ7, sN, sWP, sHF, sT, sT2, sU0, sOFF, sIT = 32, 33, 34, 35, 36, 37, 38, 39, 40, 41, 42, 43
    sM1, sM0, sMK = "s[44:45]", "s[46:47]", "s[52:53]"
    s16, s5, sCUR, sNXT, sNM = 54, 55, 56, 57, 58
    st.mark()
    a("s_load_dwordx8 s[4:11], s[0:1], 0")
    a("s_load_dwordx2 s[12:13], s[0:1], 32")
    a("s_load_dwordx4 s[48:51], s[0:1], 104")
    a("v_lshrrev_b32 v1, 6, v0")
    a(f"v_readfirstlane_b32 s{sW}, v1")
    a(f"s_sub_u32 s3, s2, {NB}")
    a(f"s_and_b32 s{sH}, s3, 7")
    a(f"s_lshl_b32 s{sH}, s{sH}, 2")
    a(f"s_lshr_b32 s3, s3, 3")
    a(f"s_mul_i32 s{sT}, s3, 37")
    a(f"s_lshr_b32 s{sT}, s{sT}, 8")
    a(f"s_add_u32 s{sH}, s{sH}, s{sT}")
    a(f"s_mul_i32 s{sT}, s{sT}, 7")
    a(f"s_sub_u32 s{sJ7}, s3, s{sT}")
    a(f"s_lshl_b32 s3, s{sJ7}, 3")
    a(f"s_add_u32 s3, s3, s{sW}")
    a(f"s_cmp_ge_u32 s3, 28")
    a(f"s_cselect_b32 s{sB}, 1, 0")
    a(f"s_cselect_b32 s{sT}, 28, 0")
    a(f"s_sub_u32 s3, s3, s{sT}")
    a(f"s_cmp_lt_u32 s3, 4")
    a(f"s_cselect_b32 s{sN}, 1, 0")
    a(f"s_mov_b32 s{s16}, 0x4000")
    a(f"s_cselect_b32 s{s5}, s{s16}, 0x7f000000")
    a(f"s_add_u32 s{sN}, s{sN}, 73")
    a(f"s_min_u32 s{sT}, s3, 4")
    a(f"s_mul_i32 s3, s3, 73")
    a(f"s_add_u32 s3, s3, s{sT}")
    a(f"s_lshl_b32 s{sT}, s{sB}, 5")
    a(f"s_add_u32 s{sT}, s{sT}, s{sH}")
    a(f"s_lshl_b32 s{sT}, s{sT}, 11")
    a(f"s_add_u32 s{sT}, s{sT}, s3")
    a(f"s_lshl_b32 s{sT}, s{sT}, 10")
    a(f"s_lshl_b32 s{sT2}, s{sN}, 10")
    a(f"s_sub_u32 s{sCUR}, s{sT2}, 0xc000")
    a(f"s_sub_u32 s{sNXT}, s{sT2}, 0x8000")
    a(f"s_and_b32 s{sWP}, s{sW}, 3")
    a(f"s_lshr_b32 s{sHF}, s{sW}, 2")
    a("v_and_b32 v1, 63, v0")
    a(f"v_and_b32 v{VM_}, 15, v0")
    a(f"v_bfe_u32 v{VG}, v0, 4, 2")
    a(f"v_lshlrev_b32 v{VO}, 4, v1")
    for k in range(1, 4):
        a(f"v_add_u32 v{VO+k}, {4096*k}, v{VO}")
    a(f"v_lshlrev_b32 v{T2}, 1, v0")
    a(f"v_sub_u32 v{T}, v0, v{VM_}")
    a(f"v_lshlrev_b32 v{T}, 13, v{T}")
    a(f"v_lshl_add_u32 v{VW}, v{VM_}, 4, v{T}")
    a(f"s_mov_b32 s{sOFF}, 0")
    a(f"s_lshl_b32 s3, s{sH}, 8")
    a("s_waitcnt lgkmcnt(0)")
    vm.issue("x", f"global_load_ushort v{X}, v{T2}, s[{sX}:{sX+1}]")
    vm.issue("x", f"global_load_ushort v{X+1}, v{T2}, s[{sX}:{sX+1}] offset:1024")
    srd(a, rK, sK, f"s{sT}", f"s{sT2}")
    srd(a, rW, sWQ, "s3", 0x400000 - 0x2000 + 256)
    srd(a, rV, sV, f"s{sT}", f"s{sT2}")

    nl = [16, 10, 16, 16]
    seq = []
    for it in range(4):
        seq += [("K", it, i) for i in range(nl[it])]
        seq += [("V", it, i) for i in range(nl[it])]

    def ld(p):
        kv, it, i = seq[p]
        r = rK if kv == "K" else rV
        so = ["0", f"s{s5}" if i == 9 else f"s{s16}", f"s{sCUR}", f"s{sNXT}"][it]
        dst = vr(RING + 4 * i, 4) if kv == "K" else ar(4 * i, 4)
        tg = f"{kv}{it}_{i}"
        vm.issue(tg, f"buffer_load_dwordx4 {dst}, v{VO + i//4}, s[{r}:{r+3}], {so} offen offset:{(i%4)*1024} nt")

    kf = P["k_first"]
    for p in range(kf):
        ld(p)
    for i in range(16):
        vm.issue(f"wq{i}", f"buffer_load_dwordx4 {ar(WA+4*i,4)}, v{VW}, s[{rW}:{rW+3}], s{sOFF} offen{WN}")
        if P.get("x_wq") and i == 1:
            a(f"s_mov_b32 s{sOFF}, 0x7f000000")
        if i < 15:
            a(f"s_add_u32 s{sOFF}, s{sOFF}, 0x2000")
    for p in range(kf, D0):
        ld(p)
    a(f"v_and_b32 v{T}, 1, v{VM_}")
    a(f"v_lshlrev_b32 v{T}, 4, v{T}")
    a(f"v_mov_b32 v{T3}, 0xffff")
    a(f"v_lshlrev_b32 v{T3}, v{T}, v{T3}")
    a(f"v_bfe_u32 v{T}, v{VM_}, 1, 2")
    for r in range(4):
        a(f"v_cmp_eq_u32 vcc, {r}, v{T}")
        a(f"v_cndmask_b32 v{MASK+r}, 0, v{T3}, vcc")
    make_sel(a, SEL, VM_, T, T3, T4)
    a("s_mov_b32 s44, 0xcccccccc")
    a("s_mov_b32 s45, 0xcccccccc")
    a("s_mov_b32 s46, 0xaaaaaaaa")
    a("s_mov_b32 s47, 0xaaaaaaaa")
    a(f"v_mov_b32 v{VNI}, {NEGINF}")
    a(f"v_and_b32 v{T}, 1, v{VG}")
    a(f"v_lshlrev_b32 v{T}, 4, v{T}")
    a(f"v_lshl_add_u32 v{VL1}, v{VM_}, 5, v{T}")
    a(f"s_lshl_b32 s3, s{sW}, 9")
    a(f"v_add_u32 v{VST}, s3, v{VL1}")
    a(f"v_lshrrev_b32 v{T}, 1, v{VG}")
    a(f"v_lshl_add_u32 v{T}, v{T}, 9, v{VST}")
    a(f"v_add_u32 v{T4}, s3, v{T}")
    a(f"s_lshl_b32 s3, s{sB}, 9")
    a(f"v_lshl_add_u32 v{T}, v{VG}, 11, s3")
    a(f"v_lshl_add_u32 v{VL3}, v{VM_}, 5, v{T}")
    a(f"s_lshl_b32 s3, s{sWP}, 8")
    a(f"s_lshl_b32 s{sT}, s{sHF}, 16")
    a(f"s_add_u32 s3, s3, s{sT}")
    a(f"v_lshl_add_u32 v{T}, v{VM_}, 4, s3")
    a(f"v_lshl_add_u32 v{T5}, v{VG}, 14, v{T}")
    a(f"v_mov_b32 v{MRUN}, {NEGINF}")
    a(f"v_mov_b32 v{LRUN}, 0")
    vm.wait("x")
    a(f"v_lshl_or_b32 v{X}, v{X+1}, 16, v{X}")
    st.mark()

    def mstep(src, i, data, first):
        bc = BC + 4 * (i & 1)
        for r in range(4):
            a(f"v_and_b32_dpp v{bc+r}, v{src}, v{MASK+r} {dpp(f'row_newbcast:{i}')}")
        return bc

    for i in range(16):
        vm.wait(f"wq{i}")
        vpat2(a, SEL, ACC, X, i, ar(WA + 4 * i, 4), i == 0, BC + 4 * (i & 1), T2 + (i & 1))
    a(f"s_lshl_b32 s3, s{sH}, 17")
    srd(a, rW, sWO, "s3", 0x20000)
    a(f"v_mov_b32 v{VW}, v{T5}")
    a(f"s_mov_b32 s{sOFF}, {0x7f000000 if P.get('x_wo') else 0}")
    lg.issue("w", f"ds_write_b128 v{T4}, {vr(ACC,4)}")
    lg.drain()
    a("s_barrier")
    for k, off in enumerate((0, 16, 1024, 1040)):
        lg.issue("q", f"ds_read_b128 {vr(32+4*k,4)}, v{VL3} offset:{off}")
    for r in range(4):
        a(f"v_mov_b32 v{ACC+r}, 0")
    lg.drain()
    for k in range(0, 8, 2):
        a(f"v_pk_add_f32 {vr(32+k,2)}, {vr(32+k,2)}, {vr(40+k,2)}")
    for k in range(4):
        a(f"v_permlane32_swap_b32 v{32+k}, v{36+k}")
    for k in (0, 2):
        a(f"v_pk_add_f32 {vr(32+k,2)}, {vr(32+k,2)}, {vr(36+k,2)}")
    a("v_permlane16_swap_b32 v32, v34")
    a("v_permlane16_swap_b32 v33, v35")
    a(f"v_pk_add_f32 {vr(32,2)}, {vr(32,2)}, {vr(34,2)}")
    a(f"v_cvt_pk_bf16_f32 v{Q}, v32, v33")
    a(f"v_mov_b32 v{Q+1}, v{Q}")
    a(f"v_permlane16_swap_b32 v{Q}, v{Q+1}")
    a(f"v_mov_b32 v{Q+2}, v{Q}")
    a(f"v_mov_b32 v{Q+3}, v{Q+1}")
    a(f"v_permlane32_swap_b32 v{Q}, v{Q+2}")
    a(f"v_permlane32_swap_b32 v{Q+1}, v{Q+3}")
    st.mark()

    state = dict(nxt=D0, wo=0)
    LOOP0 = 2 * (nl[0] + nl[1])

    def woload():
        j = state["wo"]
        vm.issue("wo", f"buffer_load_dwordx4 {ar(WA+4*j,4)}, v{VW}, s[{rW}:{rW+3}], s{sOFF} offen offset:{(j%4)*1024}{WN}")
        if j % 4 == 3 and j < 15:
            a(f"s_add_u32 s{sOFF}, s{sOFF}, 0x1000")
        state["wo"] += 1

    def slot_free(q, p, after):
        kv, it, i = seq[q]
        prev = max([r for r in range(q) if seq[r][2] == i and seq[r][0] == kv], default=-1)
        return prev < p or (prev == p and after)

    def advance(p, after):
        Dp = D + (1 if (p % P["hm"]) < P["half"] and p % 2 == 1 else 0)
        while state["nxt"] <= p + Dp and slot_free(state["nxt"], p, after):
            if state["nxt"] == LOOP0:
                while state["wo"] < 16:
                    woload()
            ld(state["nxt"])
            state["nxt"] += 1
        if after and p >= P["wo_start"] and (p - P["wo_start"]) % P["wo_every"] == 0 and state["wo"] < 16:
            woload()

    p = 0
    for it in range(3):
        n = nl[it]
        done = []
        if it == 2:
            DE = state["nxt"] - LOOP0
            assert state["wo"] == 16, state
            entry = vm.p[-DE:]
            vm.p = list(entry)
            a(f"s_mov_b32 s{sIT}, 0")
            a.label("L_A_loop")
        if n < 16:
            for i in range(n, 16):
                a(f"v_mov_b32 v{S[i]}, 0")
        for i in range(n):
            vm.wait(f"K{it}_{i}")
            advance(p, False)
            k = RING + 4 * i
            a(f"v_dot2_f32_bf16 v{S[i]}, v{k}, v{Q}, 0")
            for r in range(1, 4):
                a(f"v_dot2_f32_bf16 v{S[i]}, v{k+r}, v{Q+r}, v{S[i]}")
            advance(p, True)
            if i >= 9 and n == 16:
                tr_step1(a, S, i - 9)
                done.append(i - 9)
            p += 1
        transpose_reduce(a, S, T, sM1, sM0, done)
        s0 = S[0]
        bf16r(a, s0)
        a(f"v_mul_f32 v{s0}, {SCALE}, v{s0}")
        bf16r(a, s0)
        a(f"v_mul_f32 v{s0}, {LOG2E}, v{s0}")
        if n < 16:
            a(f"s_sub_u32 s3, s{sN}, 64")
            a(f"v_cmp_gt_u32 vcc, s3, v{VM_}")
            a(f"v_cndmask_b32 v{s0}, v{VNI}, v{s0}, vcc")
        a(f"v_max_f32 v{T2}, v{s0}, v{MRUN}")
        wave_reduce(a, "v_max_f32", T2, T3)
        a(f"v_sub_f32 v{T3}, v{MRUN}, v{T2}")
        a(f"v_sub_f32 v{T4}, v{s0}, v{T2}")
        a(f"v_exp_f32 v{T3}, v{T3}")
        a(f"v_exp_f32 v{T4}, v{T4}")
        a(f"v_mov_b32 v{MRUN}, v{T2}")
        a(f"v_cvt_pk_bf16_f32 v{PP}, v{T4}, v{T4}")
        a(f"v_fma_f32 v{LRUN}, v{LRUN}, v{T3}, v{T4}")
        for r in range(4):
            a(f"v_mul_f32 v{ACC+r}, v{ACC+r}, v{T3}")
        for i in range(n):
            bc = mstep(PP, i, None, None)
            vm.wait(f"V{it}_{i}")
            advance(p, False)
            a(f"v_mfma_f32_16x16x32_bf16 {vr(ACC,4)}, {vr(bc,4)}, {ar(4*i,4)}, {vr(ACC,4)}")
            advance(p, True)
            p += 1
    assert [t.replace("3_", "2_") for t in vm.p] == entry, (vm.p, entry)
    a(f"s_mov_b32 s{sCUR}, s{sNXT}")
    a(f"s_add_u32 s{sNXT}, s{sNXT}, 0x4000")
    a(f"s_add_u32 s{sIT}, s{sIT}, 1")
    a(f"s_cmp_lt_u32 s{sIT}, 3")
    a("s_cbranch_scc1 L_A_loop")
    st.mark()
    lg.issue("w", f"ds_write_b128 v{VST}, {vr(ACC,4)} offset:8192")
    wave_reduce(a, "v_add_f32", LRUN, T3)
    a(f"s_lshl_b32 s3, s{sW}, 3")
    a(f"v_mov_b32 v{T}, s3")
    lg.issue("w", f"ds_write_b64 v{T}, {vr(MRUN,2)} offset:12288")
    a(f"s_lshl_b32 s3, s{sHF}, 8")
    a(f"v_and_b32 v{T2}, 63, v0")
    a(f"v_lshl_add_u32 v{T3}, v{T2}, 2, s3")
    a(f"s_cmp_eq_u32 s{sJ7}, 3")
    a("s_cselect_b32 s52, -1, 0")
    a("s_cselect_b32 s53, -1, 0")
    a(f"s_cselect_b32 s{sNM}, 0, 1.0")
    a(f"s_lshl_b32 s{sU0}, s{sH}, 2")
    a(f"s_add_u32 s{sT}, s{sU0}, 128")
    a(f"s_add_u32 s{sU0}, s{sU0}, s{sJ7}")
    a(f"s_cmp_gt_u32 s{sJ7}, 3")
    a(f"s_cselect_b32 s3, 125, 0")
    a(f"s_add_u32 s{sU0}, s{sU0}, s3")
    a(f"v_mov_b32 v{T}, s{sU0}")
    a(f"v_mov_b32 v{T2}, s{sT}")
    a(f"v_cmp_lt_u32 vcc, 1, v{VG}")
    a(f"v_cndmask_b32 v{T}, v{T}, v{T2}, vcc")
    a(f"s_lshl_b32 s3, s{sW}, 9")
    a(f"s_add_u32 s3, s3, {WS_APART}")
    a(f"v_add_u32 v{VST}, s3, v{VL1}")
    a(f"v_lshl_add_u32 v{VST}, v{T}, 12, v{VST}")
    a(f"v_lshlrev_b32 v{T}, 3, v{T}")
    a(f"v_add_u32 v{VL3}, {WS_AML}, v{T}")
    a(f"v_mov_b32 v{T}, 0")
    lg.drain()
    a("s_barrier")
    vm.drain()
    ML = 64
    OV = 80
    for k in range(4):
        lg.issue("ml", f"ds_read_b128 {vr(ML+4*k,4)}, v{T} offset:{12288+16*k}")
    for k in range(4):
        lg.issue("o", f"ds_read2st64_b32 {vr(OV+2*k,2)}, v{T3} offset0:{32+4*k} offset1:{34+4*k}")
    lg.wait("ml")
    MA, MB, MALL, LA, LB = 32, 33, 34, 35, 36
    a(f"v_max3_f32 v{MA}, v{ML}, v{ML+2}, v{ML+4}")
    a(f"v_max3_f32 v{MB}, v{ML+8}, v{ML+10}, v{ML+12}")
    a(f"v_max_f32 v{MA}, v{MA}, v{ML+6}")
    a(f"v_max_f32 v{MB}, v{MB}, v{ML+14}")
    a(f"v_max_f32 v{MALL}, v{MA}, v{MB}")
    a(f"v_cndmask_b32 v{MA}, v{MALL}, v{MA}, {sMK}")
    a(f"v_cndmask_b32 v{MB}, v{MALL}, v{MB}, {sMK}")
    for w in range(8):
        a(f"v_sub_f32 v{ML+2*w}, v{ML+2*w}, v{MA if w < 4 else MB}")
    for w in range(8):
        a(f"v_exp_f32 v{ML+2*w}, v{ML+2*w}")
    lg.wait("o")
    OA = [40, 41]
    for w in range(8):
        d = OA[w >> 2]
        if w % 4 == 0:
            a(f"v_mul_f32 v{d}, v{OV+w}, v{ML+2*w}")
        else:
            a(f"v_fmac_f32 v{d}, v{OV+w}, v{ML+2*w}")
    a(f"v_fmac_f32 v{OA[0]}, s{sNM}, v{OA[1]}")
    a(f"v_cvt_pk_bf16_f32 v{X}, v{OA[0]}, v{OA[1]}")
    for w in range(8):
        L = LA if w < 4 else LB
        if w % 4 == 0:
            a(f"v_mul_f32 v{L}, v{ML+2*w}, v{ML+2*w+1}")
        else:
            a(f"v_fmac_f32 v{L}, v{ML+2*w}, v{ML+2*w+1}")
    a(f"v_fmac_f32 v{LA}, s{sNM}, v{LB}")
    a(f"v_cndmask_b32 v{T4}, v{MA}, v{MB}, vcc")
    a(f"v_cndmask_b32 v{T5}, v{LA}, v{LB}, vcc")
    for i in range(16):
        vpat2(a, SEL, ACC, X, i, ar(WA + 4 * i, 4), i == 0, BC + 4 * (i & 1), T2 + (i & 1))
    a("s_mov_b32 exec_hi, s52")
    a(f"global_store_dwordx4 v{VST}, {vr(ACC,4)}, s[{sWS}:{sWS+1}] sc1")
    a(f"s_cmp_lg_u32 s{sW}, 0")
    a("s_cbranch_scc1 L_A_noml")
    a("s_and_b32 exec_hi, s52, 1")
    a("s_mov_b32 exec_lo, 1")
    a(f"global_store_dwordx2 v{VL3}, {vr(T4,2)}, s[{sWS}:{sWS+1}] sc1")
    a.label("L_A_noml")
    signal(a, "L_A_sig", T, T2, sDBG, C3, sW, 0)
    st.mark()
    st.dump(sWS, sW)
    a("s_endpgm")


def gen_B(a, P):
    vm = Cnt(a, "vmcnt", 63)
    lg = Cnt(a, "lgkmcnt", 15)
    st = Stamps(a, P["stamps"], 64)
    sX, sCK, sWQ, sWUK, sWUV, sWO, sGW, sOUT, sDBG, sWS = 4, 8, 10, 12, 14, 16, 18, 52, 54, 56
    rA, rB, rC = 24, 28, 32
    sW, sH, sGRP, sU, sT, sT2, sOFF, sIT, sTO, sWP, sSTEP = 36, 37, 38, 39, 40, 41, 42, 43, 48, 49, 50
    sM1, sM0 = "s[44:45]", "s[46:47]"
    VL, VM_, VG, VZ = 1, 2, 3, 4
    SEL, XP, BC, ACC4 = 8, 12, 16, 24
    T, T2, T3, T4 = 28, 29, 30, 31
    VCK, VSW, VSR, VTR, VXW = 5, 6, 7, 14, 15
    WSZ = 0x400000 - 0x2000 + 256
    st.mark()
    a("s_load_dwordx2 s[4:5], s[0:1], 0")
    a("s_load_dwordx8 s[8:15], s[0:1], 48")
    a("s_load_dwordx4 s[16:19], s[0:1], 80")
    a("s_load_dwordx4 s[52:55], s[0:1], 96")
    a("s_load_dwordx2 s[56:57], s[0:1], 112")
    a("v_lshrrev_b32 v1, 6, v0")
    a(f"v_readfirstlane_b32 s{sW}, v1")
    a(f"s_and_b32 s{sT}, s2, 7")
    a(f"s_lshr_b32 s{sT2}, s2, 3")
    a(f"s_lshl_b32 s{sH}, s{sT}, 2")
    a(f"s_add_u32 s{sH}, s{sH}, s{sT2}")
    a(f"s_lshr_b32 s{sGRP}, s{sW}, 2")
    a(f"s_and_b32 s{sWP}, s{sW}, 3")
    a(f"s_lshl_b32 s{sU}, s{sH}, 1")
    a(f"s_add_u32 s{sU}, s{sU}, s{sGRP}")
    a(f"v_and_b32 v{VL}, 63, v0")
    a(f"v_and_b32 v{VM_}, 15, v0")
    a(f"v_bfe_u32 v{VG}, v0, 4, 2")
    a(f"v_mov_b32 v{VZ}, 0")
    a(f"s_lshl_b32 s3, s{sW}, 6")
    a(f"v_lshl_add_u32 v{T}, v{VG}, 4, s3")
    a(f"v_add_lshl_u32 v{T2}, v{T}, v{VM_}, 1")
    a(f"v_lshlrev_b32 v{T}, 13, v{T}")
    a(f"v_lshl_add_u32 v{VTR}, v{VM_}, 4, v{T}")
    a(f"v_add_u32 v{T}, s3, v{VG}")
    a(f"v_lshlrev_b32 v{T}, 13, v{T}")
    a(f"v_lshl_add_u32 v{T4}, v{VM_}, 4, v{T}")
    a(f"s_lshl_b32 s3, s{sWP}, 8")
    a(f"v_lshl_add_u32 v{T}, v{VM_}, 4, s3")
    a(f"v_lshl_add_u32 v{VCK}, v{VG}, 10, v{T}")
    a(f"s_lshl_b32 s{sT2}, s{sH}, 8")
    a(f"s_lshl_b32 s{sT}, s{sU}, 18")
    a(f"s_mov_b32 s{sOFF}, 0")
    a("s_waitcnt lgkmcnt(0)")
    vm.issue("x", f"global_load_ushort v{XP}, v{T2}, s[{sX}:{sX+1}]")
    vm.issue("x", f"global_load_ushort v{XP+1}, v{T2}, s[{sX}:{sX+1}] offset:1024")
    srd(a, rA, sWQ, f"s{sT2}", WSZ)
    for i in range(16):
        vm.issue(f"wq{i}", f"buffer_load_dwordx4 {ar(4*i,4)}, v{VTR}, s[{rA}:{rA+3}], s{sOFF} offen nt")
        if i < 15:
            a(f"s_add_u32 s{sOFF}, s{sOFF}, 0x2000")
    srd(a, rB, sWUK, f"s{sT2}", WSZ)
    a(f"s_mov_b32 s{sOFF}, 0")
    UK = 64
    for i in range(16):
        vm.issue(f"uk{i}", f"buffer_load_dwordx4 {vr(UK+4*i,4)}, v{T4}, s[{rB}:{rB+3}], s{sOFF} offen nt")
        if i < 15:
            a(f"s_add_u32 s{sOFF}, s{sOFF}, 0x8000")
    srd(a, rC, sCK, f"s{sT}", 0x40000)
    STG = [64, 96]

    def ckload(buf, i):
        vm.issue(f"ck{buf}", f"buffer_load_dwordx4 {ar(STG[buf]+4*i,4)}, v{VCK}, s[{rC}:{rC+3}], s{sTO} offen nt")
        a(f"s_add_u32 s{sTO}, s{sTO}, s{sSTEP}")

    a(f"s_mov_b32 s{sTO}, 0")
    a(f"s_mov_b32 s{sSTEP}, 0x1000")
    make_sel(a, SEL, VM_, T, T2, T3)
    a("s_mov_b32 s44, 0xcccccccc")
    a("s_mov_b32 s45, 0xcccccccc")
    a("s_mov_b32 s46, 0xaaaaaaaa")
    a("s_mov_b32 s47, 0xaaaaaaaa")
    a(f"v_lshrrev_b32 v{T}, 1, v{VG}")
    a(f"v_lshlrev_b32 v{T}, 9, v{T}")
    a(f"v_lshl_add_u32 v{T}, v{VM_}, 5, v{T}")
    a(f"v_and_b32 v{T2}, 1, v{VG}")
    a(f"v_lshl_add_u32 v{T}, v{T2}, 4, v{T}")
    a(f"s_lshl_b32 s3, s{sW}, 10")
    a(f"s_add_u32 s3, s3, {LDS_XCH}")
    a(f"v_add_u32 v{VXW}, s3, v{T}")
    vm.wait("x")
    a(f"v_lshl_or_b32 v{XP}, v{XP+1}, 16, v{XP}")
    for i in range(16):
        vm.wait(f"wq{i}")
        vpat2(a, SEL, ACC4, XP, i, ar(4 * i, 4), i == 0, BC + 4 * (i & 1), T + (i & 1))
        if i >= 16 - P["ck_early"]:
            pass
    lg.issue("w", f"ds_write_b128 v{VXW}, {vr(ACC4,4)}")
    for j in range(P["ck_pre"]):
        ckload(j // 8, j % 8)
    a(f"v_and_b32 v{T}, 255, v0")
    a(f"v_lshlrev_b32 v{T2}, 2, v{T}")
    a(f"v_add_u32 v{T2}, {LDS_XCH}, v{T2}")
    a(f"v_lshlrev_b32 v{T3}, 1, v{T}")
    a(f"v_add_u32 v{T3}, {LDS_XCH+8192}, v{T3}")
    a(f"v_lshlrev_b32 v{T}, 4, v{VM_}")
    a(f"v_add_u32 v{T}, {LDS_XCH+8192}, v{T}")
    lg.drain()
    a("s_barrier")
    for k in range(4):
        lg.issue("r", f"ds_read2st64_b32 {vr(32+2*k,2)}, v{T2} offset0:{8*k} offset1:{8*k+4}")
    lg.drain()
    a(f"v_pk_add_f32 {vr(32,2)}, {vr(32,2)}, {vr(34,2)}")
    a(f"v_pk_add_f32 {vr(36,2)}, {vr(36,2)}, {vr(38,2)}")
    a(f"v_pk_add_f32 {vr(32,2)}, {vr(32,2)}, {vr(36,2)}")
    a(f"v_add_f32 v32, v32, v33")
    a(f"v_cvt_pk_bf16_f32 v32, v32, v32")
    lg.issue("w", f"ds_write_b16 v{T3}, v32")
    lg.drain()
    a("s_barrier")
    QB = 16
    lg.issue("r", f"ds_read_b128 {vr(QB,4)}, v{T}")
    lg.issue("r", f"ds_read_b128 {vr(QB+4,4)}, v{T} offset:256")
    lg.drain()
    S0 = list(range(32, 48))
    S1 = list(range(48, 64))
    for i in range(16):
        vm.wait(f"uk{i}")
        for b, S in ((0, S0), (1, S1)):
            a(f"v_dot2_f32_bf16 v{S[i]}, v{UK+4*i}, v{QB+4*b}, 0")
            for r in range(1, 4):
                a(f"v_dot2_f32_bf16 v{S[i]}, v{UK+4*i+r}, v{QB+4*b+r}, v{S[i]}")
    transpose_reduce(a, S0, T, sM1, sM0)
    transpose_reduce(a, S1, T, sM1, sM0)
    a(f"v_cvt_pk_bf16_f32 v{T2}, v{S0[0]}, v{S1[0]}")
    a(f"s_lshl_b32 s3, s{sH}, 3")
    a(f"s_add_u32 s3, s3, s{sW}")
    a(f"s_lshl_b32 s3, s3, 6")
    a(f"v_lshl_add_u32 v{T}, v{VM_}, 2, v{VG}")
    a(f"v_add_lshl_u32 v{T}, v{T}, s3, 1")
    a(f"v_add_u32 v{T3}, 0x8000, v{T}")
    vm.issue("st", f"global_store_short v{T}, v{T2}, s[{sWS}:{sWS+1}] sc1")
    vm.issue("st", f"global_store_short_d16_hi v{T3}, v{T2}, s[{sWS}:{sWS+1}] sc1")
    st.mark()
    signal(a, "L_B_sig1", VZ, T, sDBG, C1, sW, 0)
    vm.p = []
    for j in range(P["ck_pre"], P["ck_mid"]):
        ckload(j // 8, j % 8)
    AF, QF = 32, 0
    SR, XT, PF = 32, 48, 16
    MRUN, LRUN, ALPHA = 24, 25, 26
    ACC = 64
    VUV = 27
    a(f"v_mov_b32 v{VUV}, v{VTR}")
    a(f"v_mul_u32_u24 v{T}, {STG_STRIDE}, v{VG}")
    a(f"v_lshl_add_u32 v{T}, v{VM_}, 4, v{T}")
    a(f"s_mul_i32 s3, s{sW}, {STG_WAVE}")
    a(f"v_add_u32 v{VSW}, s3, v{T}")
    a(f"v_and_b32 v{T}, 16, v{VL}")
    a(f"v_and_b32 v{T2}, 3, v{VL}")
    a(f"v_lshl_add_u32 v{T}, v{T2}, 2, v{T}")
    a(f"v_bfe_u32 v{T2}, v{VL}, 3, 1")
    a(f"v_lshl_add_u32 v{T}, v{T2}, 1, v{T}")
    a(f"v_bfe_u32 v{T2}, v{VL}, 2, 1")
    a(f"v_add_u32 v{T}, v{T}, v{T2}")
    a(f"v_mul_u32_u24 v{T}, {STG_STRIDE}, v{T}")
    a(f"v_lshrrev_b32 v{T2}, 5, v{VL}")
    a(f"v_lshl_add_u32 v{T}, v{T2}, 4, v{T}")
    a(f"v_add_u32 v{VSR}, s3, v{T}")
    a(f"v_and_b32 v{T}, 12, v{VM_}")
    a(f"v_add_u32 v{T}, v{T}, v{T2}")
    a(f"v_mul_u32_u24 v{T}, {STG_STRIDE}, v{T}")
    a(f"v_and_b32 v{T3}, 1, v{VG}")
    a(f"v_lshl_add_u32 v{T}, v{T3}, 5, v{T}")
    a(f"v_and_b32 v{T3}, 3, v{VM_}")
    a(f"v_lshl_add_u32 v{T}, v{T3}, 3, v{T}")
    a(f"v_add_u32 v{VTR}, s3, v{T}")
    VXR, VXWR = 12, 13
    VXS, VPW, VAW, VAR = 8, 9, 10, 11
    a(f"s_lshl_b32 s3, s{sGRP}, 15")
    a(f"s_add_u32 s3, s3, {LDS_XCH}")
    a(f"v_lshlrev_b32 v{T}, 3, v{T2}")
    a(f"v_xor_b32 v{T}, v{T}, v{VL}")
    a(f"v_lshl_add_u32 v{VXR}, v{T}, 4, s3")
    a(f"s_add_u32 s{sT}, s3, 18432")
    a(f"v_and_b32 v{T}, 31, v{VL}")
    a(f"v_lshl_add_u32 v{VAR}, v{T}, 2, s{sT}")
    a(f"v_and_b32 v{T}, 7, v{VL}")
    a(f"s_lshl_b32 s{sT2}, s{sWP}, 3")
    a(f"v_add_u32 v{T}, s{sT2}, v{T}")
    a(f"v_lshl_add_u32 v{VAW}, v{T}, 2, s{sT}")
    a(f"v_bfe_u32 v{T3}, v{VL}, 3, 1")
    a(f"v_lshl_add_u32 v{T}, v{T3}, 5, v{T}")
    a(f"v_and_b32 v{T3}, 8, v{VL}")
    a(f"v_xor_b32 v{T}, v{T}, v{T3}")
    a(f"v_lshl_add_u32 v{T}, v{T}, 4, s3")
    a(f"v_lshl_add_u32 v{VXS}, v{VG}, 10, v{T}")
    a(f"v_lshrrev_b32 v{T3}, 1, v{VG}")
    a(f"v_lshl_add_u32 v{T}, v{T3}, 10, v{T}")
    a(f"v_and_b32 v{T3}, 1, v{VG}")
    a(f"v_lshl_add_u32 v{VPW}, v{T3}, 3, v{T}")
    a(f"s_lshl_b32 s3, s{sWP}, 12")
    a(f"v_add_u32 v{VXWR}, s3, v{VXR}")
    a(f"v_and_b32 v{T}, 31, v{VL}")
    a(f"v_lshlrev_b32 v{T}, 10, v{T}")
    a(f"v_lshl_add_u32 v{T}, v{T2}, 4, v{T}")
    a(f"s_lshr_b32 s{sT}, s{sH}, 4")
    a(f"s_lshl_b32 s{sT}, s{sT}, 15")
    a(f"s_lshl_b32 s3, s{sWP}, 8")
    a(f"s_add_u32 s3, s3, s{sT}")
    a(f"v_add_u32 v{T4}, s3, v{T}")
    for r in range(64):
        a(f"v_mov_b32 v{ACC+r}, 0")
    a(f"v_mov_b32 v{MRUN}, {NEGINF}")
    a(f"v_mov_b32 v{LRUN}, 0")
    a(f"s_mov_b32 s{sIT}, 0")
    L1 = P["l1"]

    def afreg(s):
        return vr(XT + 4 * s, 4) if s < 4 else ar(AF + 4 * (s - 4), 4)

    def stage_w(buf):
        for i in range(8):
            lg.issue("sw", f"ds_write_b128 v{VSW}, {ar(STG[buf]+4*i,4)} offset:{i*4*STG_STRIDE}")

    def af_read(s0, s1):
        for s in range(s0, s1):
            lg.issue(f"af{s}", f"ds_read_b128 {afreg(s)}, v{VSR} offset:{32*s}")

    def trread(cb):
        for t in range(2):
            for sec in range(2):
                lg.issue(f"tr{cb}{t}", f"ds_read_b64_tr_b16 {ar(AF+8*cb+4*t+2*sec,2)}, v{VTR} offset:{(16*t+2*sec)*STG_STRIDE+cb*64}")

    vm.wait("ck0")
    stage_w(0)
    af_read(0, 8)
    lg.drain()
    poll(a, "L_B_p1", VZ, T, sDBG, C1, NB, sW, sT, 2)
    for s in range(8):
        vm.issue("qf", f"global_load_dwordx4 {ar(QF+4*s,4)}, v{T4}, s[{sWS}:{sWS+1}] offset:{32*s} sc1")
    assert P["ck_mid"] >= 8
    for j in range(P["ck_mid"], 16):
        ckload(j // 8, j % 8)
    for i in range(L1):
        ckload(0, i)
    vm.wait("qf")
    st.mark()
    vm.p = ["ck1"] * 8 + ["ck0"] * L1
    lg.p = [f"af{s}" for s in range(4, 8)]
    entry = list(vm.p)
    lentry = list(lg.p)
    XS = SR

    def pm(k, on):
        if P.get("bprof") and on:
            a(f"s_memtime s[{64+2*k}:{65+2*k}]")
            a("s_waitcnt lgkmcnt(0)")
            lg.p = []

    def tile(p, switch, last, prof=False):
        pm(0, prof)
        for s in range(8):
            lg.wait(f"af{s}")
            c = "0" if s == 0 else vr(SR, 16)
            a(f"v_mfma_f32_32x32x16_bf16 {vr(SR,16)}, {afreg(s)}, {ar(QF+4*s,4)}, {c}")
        for i in range(L1, 8):
            ckload(p, i)
        for q in range(4):
            lg.issue("xw", f"ds_write_b128 v{VXWR}, {vr(SR+4*q,4)} offset:{q*1024}")
        lg.drain()
        pm(1, prof)
        a("s_barrier")
        pm(2, prof)
        for w in range(4):
            lg.issue(f"x{w}", f"ds_read_b128 {vr(XS+4*w,4)}, v{VXS} offset:{w*4096}")
        trread(0)
        trread(1)
        if switch:
            a(f"s_cmp_lg_u32 s{sIT}, 2")
            a("s_cbranch_scc1 L_B_nosw")
            a(f"s_lshl_b32 s{sT2}, s{sH}, 8")
            srd(a, rC, sWUV, f"s{sT2}", WSZ)
            a(f"v_swap_b32 v{VCK}, v{VUV}")
            a(f"s_mov_b32 s{sTO}, 0")
            a(f"s_mov_b32 s{sSTEP}, 0x2000")
            a.label("L_B_nosw")
        lg.wait("x1")
        for k in (0, 2):
            a(f"v_pk_add_f32 {vr(XS+k,2)}, {vr(XS+k,2)}, {vr(XS+4+k,2)}")
        lg.wait("x3")
        for k in (0, 2):
            a(f"v_pk_add_f32 {vr(XS+8+k,2)}, {vr(XS+8+k,2)}, {vr(XS+12+k,2)}")
        for k in (0, 2):
            a(f"v_pk_add_f32 {vr(XS+k,2)}, {vr(XS+k,2)}, {vr(XS+8+k,2)}")
        for rnd in range(2):
            for k in range(2):
                a(f"v_cvt_pk_bf16_f32 v{XS+4+k}, v{XS+2*k}, v{XS+2*k+1}")
            mul = SCALE if rnd == 0 else LOG2E
            for k in range(2):
                a(f"v_lshlrev_b32 v{XS+2*k}, 16, v{XS+4+k}")
                a(f"v_and_b32 v{XS+2*k+1}, 0xffff0000, v{XS+4+k}")
            for k in range(4):
                a(f"v_mul_f32 v{XS+k}, {mul}, v{XS+k}")
        a(f"v_max3_f32 v{T}, v{XS}, v{XS+1}, v{MRUN}")
        a(f"v_max3_f32 v{T}, v{XS+2}, v{XS+3}, v{T}")
        a(f"v_max_f32_dpp v{T}, v{T}, v{T} {dpp('row_ror:8')}")
        a(f"v_mov_b32 v{T2}, v{T}")
        a(f"v_permlane16_swap_b32 v{T}, v{T2}")
        a(f"v_max_f32 v{T}, v{T}, v{T2}")
        a(f"v_mov_b32 v{T2}, v{T}")
        a(f"v_permlane32_swap_b32 v{T}, v{T2}")
        a(f"v_max_f32 v{T}, v{T}, v{T2}")
        a(f"v_sub_f32 v{T2}, v{MRUN}, v{T}")
        for k in range(4):
            a(f"v_sub_f32 v{XS+k}, v{XS+k}, v{T}")
        a(f"v_exp_f32 v{T2}, v{T2}")
        for k in range(4):
            a(f"v_exp_f32 v{XS+k}, v{XS+k}")
        a(f"v_mov_b32 v{MRUN}, v{T}")
        for k in range(2):
            a(f"v_cvt_pk_bf16_f32 v{XS+4+k}, v{XS+2*k}, v{XS+2*k+1}")
        lg.issue("pw", f"ds_write_b32 v{VAW}, v{T2}")
        lg.issue("pw", f"ds_write_b64 v{VPW}, {vr(XS+4,2)} offset:16384")
        trread(2)
        trread(3)
        a(f"v_pk_add_f32 {vr(XS,2)}, {vr(XS,2)}, {vr(XS+2,2)}")
        a(f"v_fma_f32 v{LRUN}, v{LRUN}, v{T2}, v{XS}")
        a(f"v_add_f32 v{LRUN}, v{LRUN}, v{XS+1}")
        lg.wait("pw")
        pm(3, prof)
        a("s_barrier")
        pm(4, prof)
        lg.issue("al", f"ds_read_b32 v{ALPHA}, v{VAR}")
        for t in range(2):
            lg.issue(f"pf{t}", f"ds_read_b128 {vr(PF+4*t,4)}, v{VXR} offset:{16384+t*1024}")
        if not last:
            vm.wait(f"ck{1-p}")
            stage_w(1 - p)
            af_read(0, 4)
        lg.wait("al")
        for cb in range(4):
            for k in range(16 * cb, 16 * cb + 16, 2):
                a(f"v_pk_mul_f32 {vr(ACC+k,2)}, {vr(ACC+k,2)}, {vr(ALPHA,2)} op_sel_hi:[1,0]")
            for t in range(2):
                lg.wait(f"pf{t}")
                a(f"v_mfma_f32_32x32x16_bf16 {vr(ACC+16*cb,16)}, {ar(AF+8*cb+4*t,4)}, {vr(PF+4*t,4)}, {vr(ACC+16*cb,16)}")
            if cb == 2 and not last:
                af_read(4, 8)
        if not last:
            lg.wait("af3")
            for i in range(L1):
                ckload(1 - p, i)
        pm(5, prof)
        if P.get("bprof") and prof:
            a(f"v_mov_b32 v{T}, v{ACC+63}")
        pm(6, prof)

    a.label("L_B_loop")
    tile(0, False, False, prof=True)
    tile(1, True, False)
    assert vm.p == entry and (lg.p == lentry), (vm.p, lg.p)
    a(f"s_add_u32 s{sIT}, s{sIT}, 1")
    a(f"s_cmp_lt_u32 s{sIT}, 3")
    a("s_cbranch_scc1 L_B_loop")
    tile(0, False, False)
    tile(1, False, True)
    assert lg.p == []
    st.mark()
    UV = 64
    a(f"s_lshl_b32 s{sT2}, s{sH}, 17")
    a(f"s_lshl_b32 s3, s{sGRP}, 16")
    a(f"s_add_u32 s{sT2}, s{sT2}, s3")
    srd(a, rA, sWO, f"s{sT2}", 0x10000)
    a(f"s_lshl_b32 s3, s{sWP}, 8")
    a(f"v_lshl_add_u32 v{T4}, v{VM_}, 4, s3")
    a(f"v_lshl_add_u32 v{T4}, v{VG}, 14, v{T4}")

    def woloads():
        a(f"s_mov_b32 s{sOFF}, 0")
        for j in range(16):
            a(f"buffer_load_dwordx4 {ar(4*j,4)}, v{T4}, s[{rA}:{rA+3}], s{sOFF} offen offset:{(j%4)*1024} nt")
            if j % 4 == 3 and j < 15:
                a(f"s_add_u32 s{sOFF}, s{sOFF}, 0x1000")

    a(f"s_cmp_lg_u32 s{sW}, 0")
    a("s_cbranch_scc1 L_B_wo0")
    woloads()
    a.label("L_B_wo0")
    a(f"v_add_f32_dpp v{LRUN}, v{LRUN}, v{LRUN} {dpp('row_ror:8')}")
    a(f"v_mov_b32 v{T2}, v{LRUN}")
    a(f"v_permlane16_swap_b32 v{LRUN}, v{T2}")
    a(f"v_add_f32 v{LRUN}, v{LRUN}, v{T2}")
    a(f"v_mov_b32 v{T2}, v{LRUN}")
    a(f"v_permlane32_swap_b32 v{LRUN}, v{T2}")
    a(f"v_add_f32 v{LRUN}, v{LRUN}, v{T2}")
    a(f"v_lshrrev_b32 v{T2}, 5, v{VL}")
    a(f"v_and_b32 v{T3}, 31, v{VL}")
    a(f"v_mul_u32_u24 v{T3}, {STG_STRIDE}, v{T3}")
    a(f"v_lshl_add_u32 v{T3}, v{T2}, 3, v{T3}")
    a(f"s_mul_i32 s3, s{sW}, {STG_WAVE}")
    a(f"v_add_u32 v{T3}, s3, v{T3}")
    for cb in range(4):
        for q in range(4):
            r = ACC + 16 * cb + 4 * q
            d = SR + 2 * ((4 * cb + q) % 8)
            a(f"v_cvt_pk_bf16_f32 v{d}, v{r}, v{r+1}")
            a(f"v_cvt_pk_bf16_f32 v{d+1}, v{r+2}, v{r+3}")
            lg.issue("tw", f"ds_write_b64 v{T3}, {vr(d,2)} offset:{cb*64+q*16}")
    for i in range(8):
        lg.issue(f"tr{i}", f"ds_read_b128 {vr(ACC+4*i,4)}, v{VSW} offset:{i*4*STG_STRIDE}")
    a(f"s_lshl_b32 s{sT}, s{sU}, 15")
    a(f"s_add_u32 s{sT}, s{sT}, {WS_BPART}")
    srd(a, rC, sWS, f"s{sT}", 0x8000)
    a(f"v_and_b32 v{T}, 7, v{VL}")
    a(f"s_lshl_b32 s3, s{sU}, 2")
    a(f"s_add_u32 s3, s3, s{sWP}")
    a(f"s_lshl_b32 s3, s3, 6")
    a(f"s_add_u32 s3, s3, {WS_BML}")
    a(f"v_lshl_add_u32 v{T}, v{T}, 3, s3")
    a(f"global_store_dwordx2 v{T}, {vr(MRUN,2)}, s[{sWS}:{sWS+1}] sc1")
    a(f"s_mov_b32 s{sOFF}, 0")
    for i in range(8):
        lg.wait(f"tr{i}")
        a(f"buffer_store_dwordx4 {vr(ACC+4*i,4)}, v{VUV}, s[{rC}:{rC+3}], s{sOFF} offen sc1")
        if i < 7:
            a(f"s_add_u32 s{sOFF}, s{sOFF}, 0x1000")
    if P["phase"]:
        a(f"s_cmp_lg_u32 s{sGRP}, 0")
        a("s_cbranch_scc1 L_B_ph1")
        a("s_barrier")
        a.label("L_B_ph1")
    signal(a, "L_B_sig2", VZ, T2, sDBG, C2, sW, 0, keep=0)
    vm.p = []
    a(f"s_cmp_eq_u32 s{sW}, 0")
    a("s_cbranch_scc1 L_B_wo1")
    woloads()
    a.label("L_B_wo1")
    st.mark()
    a(f"s_lshl_b32 s{sT}, s{sW}, 18")
    a(f"s_lshl_b32 s3, s{sH}, 10")
    a(f"s_add_u32 s{sT}, s{sT}, s3")
    a(f"s_add_u32 s{sT}, s{sT}, {WS_BPART}")
    srd(a, rC, sWS, f"s{sT}", 0x40000)
    a(f"v_lshlrev_b32 v{VCK}, 4, v{VL}")
    a(f"v_and_b32 v{T3}, 31, v{VL}")
    a(f"s_lshl_b32 s3, s{sGRP}, 13")
    a(f"s_lshl_b32 s{sT}, s{sH}, 3")
    a(f"s_add_u32 s{sT}, s{sT}, {WS_BML}")
    a(f"s_add_u32 s3, s3, s{sT}")
    a(f"v_lshl_add_u32 v{VSW}, v{T3}, 8, s3")
    a(f"s_lshl_b32 s3, s{sW}, 11")
    a(f"s_add_u32 s3, s3, {LDS_XCH}")
    a(f"v_lshl_add_u32 v{VTR}, v{VL}, 5, s3")
    make_sel(a, SEL, VM_, T, T2, T3)
    poll(a, "L_B_p2", VZ, T, sDBG, C2, NB, sW, sT, 2)
    st.mark()
    PR, OML = 64, 12
    vm.issue("oml", f"global_load_dwordx2 {vr(OML,2)}, v{VSW}, s[{sWS}:{sWS+1}] sc1")
    a(f"s_mov_b32 s{sOFF}, 0")
    for i in range(8):
        vm.issue(f"pr{i}", f"buffer_load_dwordx4 {vr(PR+4*i,4)}, v{VCK}, s[{rC}:{rC+3}], s{sOFF} offen sc1")
        if i < 7:
            a(f"s_add_u32 s{sOFF}, s{sOFF}, 0x8000")
    vm.wait("oml")
    MM, TT = 6, 7
    a(f"v_mov_b32 v{MM}, v{OML}")
    for c in ("row_ror:8", "row_ror:4", "row_ror:2", "row_ror:1"):
        a(f"v_max_f32_dpp v{MM}, v{MM}, v{MM} {dpp(c)}")
    a(f"v_mov_b32 v{TT}, v{MM}")
    a(f"v_permlane16_swap_b32 v{MM}, v{TT}")
    a(f"v_max_f32 v{MM}, v{MM}, v{TT}")
    a(f"v_sub_f32 v{OML}, v{OML}, v{MM}")
    a(f"v_exp_f32 v{OML}, v{OML}")
    a(f"v_mul_f32 v{MM}, v{OML}, v{OML+1}")
    for c in ("row_ror:8", "row_ror:4", "row_ror:2", "row_ror:1"):
        a(f"v_add_f32_dpp v{MM}, v{MM}, v{MM} {dpp(c)}")
    a(f"v_mov_b32 v{TT}, v{MM}")
    a(f"v_permlane16_swap_b32 v{MM}, v{TT}")
    a(f"v_add_f32 v{MM}, v{MM}, v{TT}")
    a(f"v_rcp_f32 v{MM}, v{MM}")
    a(f"v_mul_f32 v{OML}, v{OML}, v{MM}")
    a(f"s_lshl_b32 s3, s{sWP}, 3")
    SWT = 84
    for i in range(8):
        a(f"v_readlane_b32 s{SWT+i}, v{OML}, s3")
        if i < 7:
            a("s_add_u32 s3, s3, 1")
    OA = 32
    for i in range(8):
        vm.wait(f"pr{i}")
        for k in range(4):
            a(f"v_lshlrev_b32 v{MM}, 16, v{PR+4*i+k}")
            a(f"v_and_b32 v{TT}, 0xffff0000, v{PR+4*i+k}")
            if i == 0:
                a(f"v_mul_f32 v{OA+2*k}, s{SWT}, v{MM}")
                a(f"v_mul_f32 v{OA+2*k+1}, s{SWT}, v{TT}")
            else:
                a(f"v_fmac_f32 v{OA+2*k}, s{SWT+i}, v{MM}")
                a(f"v_fmac_f32 v{OA+2*k+1}, s{SWT+i}, v{TT}")
    lg.issue("w", f"ds_write_b128 v{VTR}, {vr(OA,4)}")
    lg.issue("w", f"ds_write_b128 v{VTR}, {vr(OA+4,4)} offset:16")
    a(f"v_lshl_add_u32 v{T}, v{VG}, 4, v{VM_}")
    a(f"s_lshl_b32 s3, s{sW}, 8")
    a(f"s_add_u32 s3, s3, {LDS_XCH}")
    a(f"v_lshl_add_u32 v{T}, v{T}, 2, s3")
    lg.drain()
    a("s_barrier")
    R = 40
    for k in range(4):
        lg.issue("r", f"ds_read2st64_b32 {vr(R+2*k,2)}, v{T} offset0:{16*k} offset1:{16*k+8}")
    lg.drain()
    for b in range(2):
        a(f"v_pk_add_f32 {vr(R+4*b,2)}, {vr(R+4*b,2)}, {vr(R+4*b+2,2)}")
        a(f"v_add_f32 v{R+4*b}, v{R+4*b}, v{R+4*b+1}")
    a(f"v_cvt_pk_bf16_f32 v{XP}, v{R}, v{R+4}")
    for i in range(16):
        vpat2(a, SEL, ACC4, XP, i, ar(UV + 4 * i, 4), i == 0, BC + 4 * (i & 1), T + (i & 1))
    lg.issue("w", f"ds_write_b128 v{VXW}, {vr(ACC4,4)} offset:16384")
    a(f"v_lshl_add_u32 v{T}, v{VG}, 4, v{VM_}")
    a(f"s_lshl_b32 s3, s{sGRP}, 8")
    a(f"s_add_u32 s3, s3, {LDS_XCH+16384}")
    a(f"v_lshl_add_u32 v{T}, v{T}, 2, s3")
    lg.drain()
    a("s_barrier")
    for w in range(8):
        lg.issue("r", f"ds_read2st64_b32 {vr(R+2*w,2)}, v{T} offset0:{4*w} offset1:{4*w+2}")
    lg.drain()
    for k in range(0, 8, 2):
        a(f"v_pk_add_f32 {vr(R+k,2)}, {vr(R+k,2)}, {vr(R+8+k,2)}")
    for k in range(0, 4, 2):
        a(f"v_pk_add_f32 {vr(R+k,2)}, {vr(R+k,2)}, {vr(R+4+k,2)}")
    a(f"v_pk_add_f32 {vr(R,2)}, {vr(R,2)}, {vr(R+2,2)}")
    a(f"v_cvt_pk_bf16_f32 v{XP}, v{R}, v{R+1}")
    for i in range(16):
        vpat2(a, SEL, ACC4, XP, i, ar(4 * i, 4), i == 0, BC + 4 * (i & 1), T + (i & 1))
    a(f"v_lshrrev_b32 v{T3}, 1, v{VG}")
    a(f"v_lshlrev_b32 v{T3}, 11, v{T3}")
    a(f"v_lshl_add_u32 v{T3}, v{VM_}, 5, v{T3}")
    a(f"v_and_b32 v{T4}, 1, v{VG}")
    a(f"v_lshl_add_u32 v{T3}, v{T4}, 4, v{T3}")
    a(f"s_lshl_b32 s3, s{sU}, 12")
    a(f"s_lshl_b32 s{sT}, s{sWP}, 9")
    a(f"s_add_u32 s3, s3, s{sT}")
    a(f"s_add_u32 s3, s3, {WS_BOUT}")
    a(f"v_add_u32 v{T3}, s3, v{T3}")
    a(f"global_store_dwordx4 v{T3}, {vr(ACC4,4)}, s[{sWS}:{sWS+1}] sc1")
    signal(a, "L_B_sig3", VZ, T, sDBG, C3, sW, 0)
    vm.p = []
    if st.on:
        st.n = 5
        st.mark()
    a(f"s_cmp_lg_u32 s{sGRP}, 0")
    a("s_cbranch_scc1 L_F_end")
    sB, sCB = 38, 39
    VA, VA2, VB, VB2, VML, VX = 5, 6, 7, 8, 9, 10
    ML, AP, BP, XW, G = 12, 64, 36, 44, 46
    T, T2 = 47, 48
    a(f"s_lshr_b32 s{sB}, s{sH}, 4")
    a(f"s_and_b32 s{sCB}, s{sH}, 15")
    a(f"v_lshlrev_b32 v{T}, 2, v0")
    a(f"s_lshl_b32 s{sT}, s{sB}, 10")
    a(f"v_add_u32 v{VX}, s{sT}, v{T}")
    vm.issue("x", f"global_load_dword v{XW}, v{VX}, s[{sX}:{sX+1}]")
    vm.issue("x", f"global_load_dword v{XW+1}, v{T}, s[{sGW}:{sGW+1}]")
    a(f"v_lshrrev_b32 v{T}, 3, v0")
    a(f"v_and_b32 v{T2}, 7, v0")
    a(f"v_lshlrev_b32 v{T2}, 4, v{T2}")
    a(f"v_lshl_add_u32 v{VA}, v{T}, 14, v{T2}")
    a(f"v_lshl_add_u32 v{T2}, v{T}, 13, v{T2}")
    a(f"s_lshl_b32 s3, s{sCB}, 7")
    a(f"s_lshl_b32 s{sT}, s{sB}, 19")
    a(f"s_add_u32 s{sT}, s{sT}, s3")
    a(f"s_add_u32 s{sT}, s{sT}, {WS_APART + 0x1000}")
    a(f"v_add_u32 v{VA}, s{sT}, v{VA}")
    a(f"v_add_u32 v{VA2}, 0x2000, v{VA}")
    a(f"s_lshl_b32 s{sT}, s{sB}, 11")
    a(f"s_add_u32 s{sT}, s{sT}, s3")
    a(f"s_add_u32 s{sT}, s{sT}, {WS_BOUT}")
    a(f"v_add_u32 v{VB}, s{sT}, v{T2}")
    a(f"v_add_u32 v{VB2}, 0x1000, v{VB}")
    a(f"s_lshl_b32 s{sT}, s{sB}, 10")
    a(f"s_add_u32 s{sT}, s{sT}, {WS_AML}")
    a(f"v_lshl_add_u32 v{VML}, v{T}, 5, s{sT}")
    vm.wait("x")
    a(f"v_lshlrev_b32 v{T}, 16, v{XW}")
    a(f"v_lshlrev_b32 v{T2}, 16, v{XW+1}")
    a(f"v_and_b32 v{XW}, 0xffff0000, v{XW}")
    a(f"v_and_b32 v{XW+1}, 0xffff0000, v{XW+1}")
    a(f"v_mul_f32 v{T}, v{T}, v{T2}")
    a(f"v_mul_f32 v{T2}, v{XW}, v{XW+1}")
    a(f"v_cvt_pk_bf16_f32 v{T}, v{T}, v{T2}")
    a(f"v_lshlrev_b32 v{T2}, 16, v{T}")
    a(f"v_and_b32 v{T}, 0xffff0000, v{T}")
    a(f"v_add_f32 v{G}, v{T}, v{T2}")
    wave_reduce(a, "v_add_f32", G, T)
    a(f"s_lshl_b32 s3, s{sW}, 2")
    a(f"v_mov_b32 v{T}, s3")
    lg.issue("w", f"ds_write_b32 v{T}, v{G} offset:2048")
    lg.drain()
    poll(a, "L_B_p3", VZ, T, sDBG, C3, NB if P.get("skipA") else NA + NB, sW, sT, P["sleep3"])
    ws = f"s[{sWS}:{sWS+1}]"
    vm.issue("ml", f"global_load_dwordx4 {vr(ML,4)}, v{VML}, {ws} sc1")
    vm.issue("ml", f"global_load_dwordx4 {vr(ML+4,4)}, v{VML}, {ws} offset:16 sc1")
    for sp in range(4):
        for hf in range(2):
            vm.issue(f"a{sp}", f"global_load_dwordx4 {vr(AP+8*sp+4*hf,4)}, v{VA if sp < 2 else VA2}, {ws} offset:{(sp&1)*4096+hf*2048-4096} sc1")
    vm.issue("b", f"global_load_dwordx4 {vr(BP,4)}, v{VB}, {ws} sc1")
    vm.issue("b", f"global_load_dwordx4 {vr(BP+4,4)}, v{VB2}, {ws} sc1")
    GG = 50
    lg.issue("g", f"ds_read_b128 {vr(GG,4)}, v{VZ} offset:2048")
    lg.drain()
    a(f"v_pk_add_f32 {vr(GG,2)}, {vr(GG,2)}, {vr(GG+2,2)}")
    a(f"v_add_f32 v{G}, v{GG}, v{GG+1}")
    bf16r(a, G)
    a(f"v_mul_f32 v{G}, 0xbfb8aa3b, v{G}")
    a(f"v_exp_f32 v{G}, v{G}")
    a(f"v_add_f32 v{G}, 1.0, v{G}")
    a(f"v_rcp_f32 v{G}, v{G}")
    bf16r(a, G)
    a(f"v_sub_f32 v{GG}, 1.0, v{G}")
    bf16r(a, GG)
    a(f"v_and_b32 v{T}, 7, v0")
    a(f"v_lshrrev_b32 v{T2}, 4, v0")
    a(f"v_lshl_add_u32 v{T}, v{T}, 2, v{T2}")
    a(f"s_lshl_b32 s3, s{sH}, 6")
    a(f"v_lshl_add_u32 v{VX}, v{T}, 1, s3")
    vm.wait("ml")
    a(f"v_max3_f32 v{T}, v{ML}, v{ML+2}, v{ML+4}")
    a(f"v_max_f32 v{T}, v{T}, v{ML+6}")
    for sp in range(4):
        a(f"v_sub_f32 v{ML+2*sp}, v{ML+2*sp}, v{T}")
    for sp in range(4):
        a(f"v_exp_f32 v{ML+2*sp}, v{ML+2*sp}")
    a(f"v_mul_f32 v{T}, v{ML}, v{ML+1}")
    for sp in range(1, 4):
        a(f"v_fmac_f32 v{T}, v{ML+2*sp}, v{ML+2*sp+1}")
    a(f"v_rcp_f32 v{T}, v{T}")
    for sp in range(4):
        a(f"v_mul_f32 v{ML+2*sp}, v{ML+2*sp}, v{T}")
    vm.wait("a0")
    for k in (0, 2):
        a(f"v_pk_add_f32 {vr(AP+k,2)}, {vr(AP+k,2)}, {vr(AP+4+k,2)}")
    for k in range(4):
        a(f"v_mul_f32 v{AP+k}, v{AP+k}, v{ML}")
    for sp in range(1, 4):
        vm.wait(f"a{sp}")
        for k in (0, 2):
            a(f"v_pk_add_f32 {vr(AP+8*sp+k,2)}, {vr(AP+8*sp+k,2)}, {vr(AP+8*sp+4+k,2)}")
        for k in range(4):
            a(f"v_fmac_f32 v{AP+k}, v{AP+8*sp+k}, v{ML+2*sp}")
    vm.wait("b")
    for k in range(4):
        a(f"v_add_f32 v{AP+4+k}, v{BP+k}, v{BP+4+k}")
    V = [AP + k for k in range(8)]
    for k in range(8):
        a(f"v_add_f32_dpp v{V[k]}, v{V[k]}, v{V[k]} {dpp('row_ror:8')}")
    for k in range(0, 8, 2):
        a(f"v_permlane16_swap_b32 v{V[k]}, v{V[k+1]}")
    for k in range(0, 8, 2):
        a(f"v_add_f32 v{V[k]}, v{V[k]}, v{V[k+1]}")
    for k in range(0, 8, 4):
        a(f"v_permlane32_swap_b32 v{V[k]}, v{V[k+2]}")
    a(f"v_add_f32 v{V[0]}, v{V[0]}, v{V[2]}")
    a(f"v_add_f32 v{V[1]}, v{V[4]}, v{V[6]}")
    a(f"v_lshlrev_b32 v{T}, 3, v0")
    lg.issue("w", f"ds_write_b64 v{T}, {vr(V[0],2)}")
    lg.drain()
    a("s_barrier")
    a(f"s_cmp_lg_u32 s{sW}, 0")
    a("s_cbranch_scc1 L_F_end")
    for w in range(4):
        lg.issue("r", f"ds_read_b64 {vr(AP+2*w,2)}, v{T} offset:{512*w}")
    lg.drain()
    a(f"v_pk_add_f32 {vr(AP,2)}, {vr(AP,2)}, {vr(AP+2,2)}")
    a(f"v_pk_add_f32 {vr(AP+4,2)}, {vr(AP+4,2)}, {vr(AP+6,2)}")
    a(f"v_pk_add_f32 {vr(AP,2)}, {vr(AP,2)}, {vr(AP+4,2)}")
    a(f"v_cvt_pk_bf16_f32 v{T}, v{AP}, v{AP+1}")
    a(f"v_lshlrev_b32 v{AP}, 16, v{T}")
    a(f"v_and_b32 v{AP+1}, 0xffff0000, v{T}")
    a(f"v_mul_f32 v{AP}, v{AP}, v{G}")
    a(f"v_mul_f32 v{AP+1}, v{AP+1}, v{GG}")
    a(f"v_cvt_pk_bf16_f32 v{T}, v{AP}, v{AP+1}")
    a(f"v_lshlrev_b32 v{AP}, 16, v{T}")
    a(f"v_and_b32 v{AP+1}, 0xffff0000, v{T}")
    a(f"v_add_f32 v{AP}, v{AP}, v{AP+1}")
    a(f"v_cvt_pk_bf16_f32 v{AP}, v{AP}, v{AP}")
    a("s_mov_b32 exec_lo, 0x00ff00ff")
    a("s_mov_b32 exec_hi, 0x00ff00ff")
    a(f"global_store_short v{VX}, v{AP}, s[{sOUT}:{sOUT+1}]")
    a.label("L_F_end")
    st.mark()
    st.dump(sWS, sW)
    a("s_endpgm")


def build(P):
    a = Asm()
    a.raw(f"; @launch grid=(256,1,1) block=(512,1,1) lds={LDS_TOTAL}")
    a.raw('.amdgcn_target "amdgcn-amd-amdhsa--gfx950"\n.text')
    a.raw(f".globl {NAME}\n.p2align 8\n.type {NAME},@function\n{NAME}:")
    a(f"s_cmp_lt_u32 s2, {NB}")
    a("s_cbranch_scc1 L_B_entry")
    a(f"s_cmp_lt_u32 s2, {NA+NB}")
    a("s_cbranch_scc1 L_A_entry")
    a("s_endpgm")
    a.label("L_A_entry")
    if P.get("skipA"):
        a("s_endpgm")
    if P.get("diag"):
        a("s_getreg_b32 s3, hwreg(HW_REG_XCC_ID)")
        a("s_and_b32 s3, s3, 7")
        a("s_and_b32 s4, s2, 7")
        a("s_cmp_eq_u32 s3, s4")
        a("s_cbranch_scc1 L_diag_ok")
        a("s_mov_b32 s4, 0")
        a.label("L_diag_loop")
        a("s_sleep 127")
        a("s_add_u32 s4, s4, 1")
        a("s_cmp_lt_u32 s4, 12")
        a("s_cbranch_scc1 L_diag_loop")
        a.label("L_diag_ok")
    gen_A(a, P)
    a.raw(".p2align 6")
    a.label("L_B_entry")
    if P.get("skipB"):
        a("s_endpgm")
    gen_B(a, P)
    a.raw('.section .rodata,"a"')
    a.raw(f""".p2align 6
.amdhsa_kernel {NAME}
  .amdhsa_next_free_vgpr 256
  .amdhsa_next_free_sgpr 102
  .amdhsa_accum_offset 128
  .amdhsa_group_segment_fixed_size 0
  .amdhsa_kernarg_size 120
  .amdhsa_user_sgpr_count 2
  .amdhsa_user_sgpr_kernarg_segment_ptr 1
  .amdhsa_system_sgpr_workgroup_id_x 1
.end_amdhsa_kernel""")
    return a.text()


DEFAULT = dict(D=4, D0=32, w_nt=1, k_first=4, stamps=0, wo_start=4, wo_every=2, sleep3=4, ck_early=0, phase=0, l1=4, l2=3, half=0, hm=2, ck_pre=16, ck_mid=16)

if __name__ == "__main__":
    out = sys.argv[1]
    P = dict(DEFAULT)
    for kv in sys.argv[2:]:
        k, v = kv.split("=")
        P[k] = int(v)
    open(out, "w").write(build(P))
```

```python
import sys
sys.path.insert(0, "dev")
from asmlib import *
from gen import (Cnt, dpp, transpose_reduce, tr_step1, wave_reduce, bf16r, srd, LOG2E, SCALE, NEGINF,
                 WS_QABS, WS_BML, WS_AML, WS_BPART, WS_APART, WS_STAMP, STG_STRIDE, STG_WAVE)
WS_BOUT = 0x600000

NAME = "gated_mix__mha_block_cached__compressed_kv_cla__decode_kernel"
LDS_XCH = 8 * STG_WAVE
LDS_TOTAL = LDS_XCH + 65536
C1, C2, C4 = 0, 64, 68
NB, NA = 32, 224


class Stamps:
    def __init__(self, a, on, sbase):
        self.a, self.on, self.sbase, self.n = a, on, sbase, 0

    def mark(self):
        if self.on == 1:
            assert self.n < 7
            self.a(f"s_memrealtime s[{self.sbase + 2*self.n}:{self.sbase + 2*self.n + 1}]")
            self.a("s_waitcnt lgkmcnt(0)")
            self.n += 1

    def dump(self, wsreg, wave_s):
        if not self.on:
            return
        a = self.a
        a("s_getreg_b32 s3, hwreg(HW_REG_HW_ID)")
        a(f"s_mov_b32 s{self.sbase+14}, s3")
        a("s_getreg_b32 s3, hwreg(HW_REG_XCC_ID)")
        a(f"s_mov_b32 s{self.sbase+15}, s3")
        a("s_mov_b64 exec, -1")
        for i in range(16):
            a(f"v_mov_b32 v{i+4}, s{self.sbase+i}")
        a("s_lshl_b32 s3, s2, 3")
        a(f"s_add_u32 s3, s3, s{wave_s}")
        a("s_lshl_b32 s3, s3, 6")
        a(f"s_add_u32 s3, s3, {WS_STAMP}")
        a("v_mov_b32 v1, s3")
        a("s_mov_b64 exec, 1")
        for i in range(4):
            a(f"global_store_dwordx4 v1, v[{4+4*i}:{7+4*i}], s[{wsreg}:{wsreg+1}] offset:{16*i}")


def make_sel(a, SEL, VM_, T, T2, T3):
    a(f"v_mov_b32 v{T}, 0x0100")
    a(f"v_mov_b32 v{T2}, 0x0302")
    a(f"v_cmp_gt_u32 vcc, 8, v{VM_}")
    a(f"v_cndmask_b32 v{T}, v{T2}, v{T}, vcc")
    a(f"v_lshlrev_b32 v{T2}, 16, v{T}")
    a(f"v_or_b32 v{T2}, 0x0c0c, v{T2}")
    a(f"v_or_b32 v{T}, 0x0c0c0000, v{T}")
    a(f"v_and_b32 v{T3}, 1, v{VM_}")
    a(f"v_cmp_eq_u32 vcc, 1, v{T3}")
    a(f"v_cndmask_b32 v{T}, v{T}, v{T2}, vcc")
    a(f"v_bfe_u32 v{T2}, v{VM_}, 1, 2")
    a(f"v_mov_b32 v{T3}, 0x0c0c0c0c")
    for r in range(4):
        a(f"v_cmp_eq_u32 vcc, {r}, v{T2}")
        a(f"v_cndmask_b32 v{SEL+r}, v{T3}, v{T}, vcc")


def vpat2(a, SEL, acc, src, i, data, first, bc, t):
    a(f"v_mov_b32_dpp v{t}, v{src} {dpp(f'row_newbcast:{i}')}")
    for r in range(4):
        a(f"v_perm_b32 v{bc+r}, v{t}, v{t}, v{SEL+r}")
    c = "0" if first else vr(acc, 4)
    a(f"v_mfma_f32_16x16x32_bf16 {vr(acc,4)}, {vr(bc,4)}, {data}, {c}")


def poll(a, name, vaddr, vt, sdbg, off, target, sW, sT, sleep=4, target2=0):
    a(f"s_cmp_lg_u32 s{sW}, 0")
    a(f"s_cbranch_scc1 {name}_done")
    a(f"s_mov_b32 s{sT}, 0")
    a.label(f"{name}_loop")
    if target2:
        a(f"global_load_dwordx2 {vr(vt,2)}, v{vaddr}, s[{sdbg}:{sdbg+1}] offset:{off} sc1")
        a("s_waitcnt vmcnt(0)")
        a(f"v_cmp_le_u32 vcc, {target2}, v{vt+1}")
        a(f"v_cndmask_b32 v{vt}, 0, v{vt}, vcc")
    else:
        a(f"global_load_dword v{vt}, v{vaddr}, s[{sdbg}:{sdbg+1}] offset:{off} sc1")
        a("s_waitcnt vmcnt(0)")
    a(f"v_readfirstlane_b32 s3, v{vt}")
    a(f"s_cmp_ge_u32 s3, {target}")
    a(f"s_cbranch_scc1 {name}_done")
    a(f"s_sleep {sleep}")
    a(f"s_add_u32 s{sT}, s{sT}, 1")
    a(f"s_cmp_lt_u32 s{sT}, 0x8000")
    a(f"s_cbranch_scc1 {name}_loop")
    a.label(f"{name}_done")
    a("s_barrier")


def signal(a, name, vzero, vt, sdbg, off, sW, wave, keep=0):
    a(f"s_waitcnt vmcnt({keep})")
    a("s_barrier")
    a(f"s_cmp_lg_u32 s{sW}, {wave}")
    a(f"s_cbranch_scc1 {name}_skip")
    a("s_mov_b64 exec, 1")
    a(f"v_mov_b32 v{vt}, 1")
    a(f"global_atomic_add v{vzero}, v{vt}, s[{sdbg}:{sdbg+1}] offset:{off} sc1")
    a("s_mov_b64 exec, -1")
    a.label(f"{name}_skip")


def gen_A(a, P, X_=""):
    D, D0 = P["D"], P["D0"]
    WN = " nt" if P["w_nt"] else ""
    vm = Cnt(a, "vmcnt", 63)
    lg = Cnt(a, "lgkmcnt", 15)
    st = Stamps(a, P["stamps"], 64)
    VL1, VM_, VG, VO = 1, 2, 3, 4
    MASK, Q, BC, ACC = 8, 12, 16, 24
    MRUN, LRUN, PP, T = 28, 29, 30, 31
    S = list(range(32, 48))
    X, SEL, VW, T2, T3, T4, T5, VNI = 48, 52, 56, 58, 59, 60, 61, 57
    VL3, VST, VGS, VGM = 62, 63, 50, 51
    RING = 64
    WA = 64
    sX, sK, sV, sWQ, sWO, sDBG, sWS = 4, 6, 8, 10, 12, 48, 50
    rK, rV, rW = 16, 20, 24
    sW, sH, sB, sJ7, sN, sWP, sHF, sT, sT2, sU0, sOFF, sIT = 32, 33, 34, 35, 36, 37, 38, 39, 40, 41, 42, 43
    sM1, sM0, sMK = "s[44:45]", "s[46:47]", "s[52:53]"
    s16, s5, sCUR, sNXT, sNM = 54, 55, 56, 57, 58
    st.mark()
    a("s_load_dwordx8 s[4:11], s[0:1], 0")
    a("s_load_dwordx2 s[12:13], s[0:1], 32")
    a("s_load_dwordx4 s[48:51], s[0:1], 104")
    a("v_lshrrev_b32 v1, 6, v0")
    a(f"v_readfirstlane_b32 s{sW}, v1")
    a(f"s_sub_u32 s3, s2, {NB}")
    a(f"s_and_b32 s{sH}, s3, 7")
    a(f"s_lshl_b32 s{sH}, s{sH}, 2")
    a(f"s_lshr_b32 s3, s3, 3")
    a(f"s_mul_i32 s{sT}, s3, 37")
    a(f"s_lshr_b32 s{sT}, s{sT}, 8")
    a(f"s_add_u32 s{sH}, s{sH}, s{sT}")
    a(f"s_mul_i32 s{sT}, s{sT}, 7")
    a(f"s_sub_u32 s{sJ7}, s3, s{sT}")
    a(f"s_lshl_b32 s3, s{sJ7}, 3")
    a(f"s_add_u32 s3, s3, s{sW}")
    a(f"s_cmp_ge_u32 s3, 28")
    a(f"s_cselect_b32 s{sB}, 1, 0")
    a(f"s_cselect_b32 s{sT}, 28, 0")
    a(f"s_sub_u32 s3, s3, s{sT}")
    a(f"s_cmp_lt_u32 s3, 4")
    a(f"s_cselect_b32 s{sN}, 1, 0")
    a(f"s_mov_b32 s{s16}, 0x4000")
    a(f"s_cselect_b32 s{s5}, s{s16}, 0x7f000000")
    a(f"s_add_u32 s{sN}, s{sN}, 73")
    a(f"s_min_u32 s{sT}, s3, 4")
    a(f"s_mul_i32 s3, s3, 73")
    a(f"s_add_u32 s3, s3, s{sT}")
    a(f"s_lshl_b32 s{sT}, s{sB}, 5")
    a(f"s_add_u32 s{sT}, s{sT}, s{sH}")
    a(f"s_lshl_b32 s{sT}, s{sT}, 11")
    a(f"s_add_u32 s{sT}, s{sT}, s3")
    a(f"s_lshl_b32 s{sT}, s{sT}, 10")
    a(f"s_lshl_b32 s{sT2}, s{sN}, 10")
    a(f"s_sub_u32 s{sCUR}, s{sT2}, 0xc000")
    a(f"s_sub_u32 s{sNXT}, s{sT2}, 0x8000")
    a(f"s_and_b32 s{sWP}, s{sW}, 3")
    a(f"s_lshr_b32 s{sHF}, s{sW}, 2")
    a("v_and_b32 v1, 63, v0")
    a(f"v_and_b32 v{VM_}, 15, v0")
    a(f"v_bfe_u32 v{VG}, v0, 4, 2")
    a(f"v_lshlrev_b32 v{VO}, 4, v1")
    for k in range(1, 4):
        a(f"v_add_u32 v{VO+k}, {4096*k}, v{VO}")
    a(f"v_and_b32 v{T4}, 1, v{VG}")
    a(f"v_lshlrev_b32 v{T4}, 4, v{T4}")
    a(f"v_lshl_add_u32 v{VL1}, v{VM_}, 5, v{T4}")
    a(f"s_cmp_eq_u32 s{sJ7}, 3")
    a("s_cselect_b32 s52, -1, 0")
    a("s_cselect_b32 s53, -1, 0")
    a(f"s_cselect_b32 s{sNM}, 0, 1.0")
    a(f"s_lshl_b32 s{sU0}, s{sH}, 2")
    a(f"s_add_u32 s{sIT}, s{sU0}, 128")
    a(f"s_add_u32 s{sU0}, s{sU0}, s{sJ7}")
    a(f"s_cmp_gt_u32 s{sJ7}, 3")
    a(f"s_cselect_b32 s3, 125, 0")
    a(f"s_add_u32 s{sU0}, s{sU0}, s3")
    a(f"v_mov_b32 v{T4}, s{sU0}")
    a(f"v_mov_b32 v{T3}, s{sIT}")
    a(f"v_cmp_lt_u32 vcc, 1, v{VG}")
    a(f"v_cndmask_b32 v{T4}, v{T4}, v{T3}, vcc")
    a(f"s_lshl_b32 s3, s{sW}, 9")
    a(f"s_add_u32 s3, s3, {WS_APART}")
    a(f"v_add_u32 v{VGS}, s3, v{VL1}")
    a(f"v_lshl_add_u32 v{VGS}, v{T4}, 12, v{VGS}")
    a(f"v_lshlrev_b32 v{T4}, 3, v{T4}")
    a(f"v_add_u32 v{VGM}, {WS_AML}, v{T4}")
    for r in range(4):
        a(f"v_mov_b32 v{32+r}, -1")
    a(f"v_lshlrev_b32 v{T2}, 1, v0")
    a(f"v_sub_u32 v{T}, v0, v{VM_}")
    a(f"v_lshlrev_b32 v{T}, 13, v{T}")
    a(f"v_lshl_add_u32 v{VW}, v{VM_}, 4, v{T}")
    a(f"s_mov_b32 s{sOFF}, 0")
    a(f"s_lshl_b32 s3, s{sH}, 8")
    a("s_waitcnt lgkmcnt(0)")
    a("s_mov_b32 exec_hi, s52")
    a(f"global_store_dwordx4 v{VGS}, {vr(32,4)}, s[{sWS}:{sWS+1}] sc1")
    a(f"s_cmp_lg_u32 s{sW}, 0")
    a("s_cbranch_scc1 L_A_mk" + X_)
    a("s_and_b32 exec_hi, s52, 1")
    a("s_mov_b32 exec_lo, 1")
    a(f"global_store_dwordx2 v{VGM}, {vr(32,2)}, s[{sWS}:{sWS+1}] sc1")
    a.label("L_A_mk" + X_)
    a("s_mov_b64 exec, -1")
    vm.issue("x", f"global_load_ushort v{X}, v{T2}, s[{sX}:{sX+1}]")
    vm.issue("x", f"global_load_ushort v{X+1}, v{T2}, s[{sX}:{sX+1}] offset:1024")
    srd(a, rK, sK, f"s{sT}", f"s{sT2}")
    srd(a, rW, sWQ, "s3", 0x400000 - 0x2000 + 256)
    srd(a, rV, sV, f"s{sT}", f"s{sT2}")

    nl = [16, 10, 16, 16]
    seq = []
    for it in range(4):
        seq += [("K", it, i) for i in range(nl[it])]
        seq += [("V", it, i) for i in range(nl[it])]

    def ld(p):
        kv, it, i = seq[p]
        r = rK if kv == "K" else rV
        so = ["0", f"s{s5}" if i == 9 else f"s{s16}", f"s{sCUR}", f"s{sNXT}"][it]
        dst = vr(RING + 4 * i, 4) if kv == "K" else ar(4 * i, 4)
        tg = f"{kv}{it}_{i}"
        vm.issue(tg, f"buffer_load_dwordx4 {dst}, v{VO + i//4}, s[{r}:{r+3}], {so} offen offset:{(i%4)*1024} nt")

    kf = P["k_first"]
    for p in range(kf):
        ld(p)
    for i in range(16):
        vm.issue(f"wq{i}", f"buffer_load_dwordx4 {ar(WA+4*i,4)}, v{VW}, s[{rW}:{rW+3}], s{sOFF} offen{WN}")
        if P.get("x_wq") and i == 1:
            a(f"s_mov_b32 s{sOFF}, 0x7f000000")
        if i < 15:
            a(f"s_add_u32 s{sOFF}, s{sOFF}, 0x2000")
    for p in range(kf, D0):
        ld(p)
    a(f"v_and_b32 v{T}, 1, v{VM_}")
    a(f"v_lshlrev_b32 v{T}, 4, v{T}")
    a(f"v_mov_b32 v{T3}, 0xffff")
    a(f"v_lshlrev_b32 v{T3}, v{T}, v{T3}")
    a(f"v_bfe_u32 v{T}, v{VM_}, 1, 2")
    for r in range(4):
        a(f"v_cmp_eq_u32 vcc, {r}, v{T}")
        a(f"v_cndmask_b32 v{MASK+r}, 0, v{T3}, vcc")
    make_sel(a, SEL, VM_, T, T3, T4)
    a("s_mov_b32 s44, 0xcccccccc")
    a("s_mov_b32 s45, 0xcccccccc")
    a("s_mov_b32 s46, 0xaaaaaaaa")
    a("s_mov_b32 s47, 0xaaaaaaaa")
    a(f"v_mov_b32 v{VNI}, {NEGINF}")
    a(f"s_lshl_b32 s3, s{sW}, 9")
    a(f"v_add_u32 v{VST}, s3, v{VL1}")
    a(f"v_lshrrev_b32 v{T}, 1, v{VG}")
    a(f"v_lshl_add_u32 v{T}, v{T}, 9, v{VST}")
    a(f"v_add_u32 v{T4}, s3, v{T}")
    a(f"s_lshl_b32 s3, s{sB}, 9")
    a(f"v_lshl_add_u32 v{T}, v{VG}, 11, s3")
    a(f"v_lshl_add_u32 v{VL3}, v{VM_}, 5, v{T}")
    a(f"s_lshl_b32 s3, s{sWP}, 8")
    a(f"s_lshl_b32 s{sT}, s{sHF}, 16")
    a(f"s_add_u32 s3, s3, s{sT}")
    a(f"v_lshl_add_u32 v{T}, v{VM_}, 4, s3")
    a(f"v_lshl_add_u32 v{T5}, v{VG}, 14, v{T}")
    a(f"v_mov_b32 v{MRUN}, {NEGINF}")
    a(f"v_mov_b32 v{LRUN}, 0")
    vm.wait("x")
    a(f"v_lshl_or_b32 v{X}, v{X+1}, 16, v{X}")
    st.mark()

    def mstep(src, i, data, first):
        bc = BC + 4 * (i & 1)
        for r in range(4):
            a(f"v_and_b32_dpp v{bc+r}, v{src}, v{MASK+r} {dpp(f'row_newbcast:{i}')}")
        return bc

    for i in range(16):
        vm.wait(f"wq{i}")
        vpat2(a, SEL, ACC, X, i, ar(WA + 4 * i, 4), i == 0, BC + 4 * (i & 1), T2 + (i & 1))
    a(f"s_lshl_b32 s3, s{sH}, 17")
    srd(a, rW, sWO, "s3", 0x20000)
    a(f"v_mov_b32 v{VW}, v{T5}")
    a(f"s_mov_b32 s{sOFF}, {0x7f000000 if P.get('x_wo') else 0}")
    lg.issue("w", f"ds_write_b128 v{T4}, {vr(ACC,4)}")
    lg.drain()
    a("s_barrier")
    a(f"s_cmp_lg_u32 s{sW}, 0")
    a("s_cbranch_scc1 L_A_c4" + X_)
    a("s_mov_b64 exec, 1")
    a(f"v_mov_b32 v{T2}, 0")
    a(f"v_mov_b32 v{T3}, 1")
    a(f"global_atomic_add v{T2}, v{T3}, s[{sDBG}:{sDBG+1}] offset:{C4} sc1")
    a("s_mov_b64 exec, -1")
    a.label("L_A_c4" + X_)
    for k, off in enumerate((0, 16, 1024, 1040)):
        lg.issue("q", f"ds_read_b128 {vr(32+4*k,4)}, v{VL3} offset:{off}")
    for r in range(4):
        a(f"v_mov_b32 v{ACC+r}, 0")
    lg.drain()
    for k in range(0, 8, 2):
        a(f"v_pk_add_f32 {vr(32+k,2)}, {vr(32+k,2)}, {vr(40+k,2)}")
    for k in range(4):
        a(f"v_permlane32_swap_b32 v{32+k}, v{36+k}")
    for k in (0, 2):
        a(f"v_pk_add_f32 {vr(32+k,2)}, {vr(32+k,2)}, {vr(36+k,2)}")
    a("v_permlane16_swap_b32 v32, v34")
    a("v_permlane16_swap_b32 v33, v35")
    a(f"v_pk_add_f32 {vr(32,2)}, {vr(32,2)}, {vr(34,2)}")
    a(f"v_cvt_pk_bf16_f32 v{Q}, v32, v33")
    a(f"v_mov_b32 v{Q+1}, v{Q}")
    a(f"v_permlane16_swap_b32 v{Q}, v{Q+1}")
    a(f"v_mov_b32 v{Q+2}, v{Q}")
    a(f"v_mov_b32 v{Q+3}, v{Q+1}")
    a(f"v_permlane32_swap_b32 v{Q}, v{Q+2}")
    a(f"v_permlane32_swap_b32 v{Q+1}, v{Q+3}")
    st.mark()

    state = dict(nxt=D0, wo=0)
    LOOP0 = 2 * (nl[0] + nl[1])

    def woload():
        j = state["wo"]
        vm.issue("wo", f"buffer_load_dwordx4 {ar(WA+4*j,4)}, v{VW}, s[{rW}:{rW+3}], s{sOFF} offen offset:{(j%4)*1024}{WN}")
        if j % 4 == 3 and j < 15:
            a(f"s_add_u32 s{sOFF}, s{sOFF}, 0x1000")
        state["wo"] += 1

    def slot_free(q, p, after):
        kv, it, i = seq[q]
        prev = max([r for r in range(q) if seq[r][2] == i and seq[r][0] == kv], default=-1)
        return prev < p or (prev == p and after)

    def advance(p, after):
        Dp = D - (1 if (p % P["hm"]) < P["half"] else 0)
        while state["nxt"] <= p + Dp and slot_free(state["nxt"], p, after):
            if state["nxt"] == LOOP0:
                while state["wo"] < 16:
                    woload()
            ld(state["nxt"])
            state["nxt"] += 1
        if after and p >= P["wo_start"] and (p - P["wo_start"]) % P["wo_every"] == 0 and state["wo"] < 16:
            woload()

    p = 0
    for it in range(3):
        n = nl[it]
        done = []
        if it == 2:
            DE = state["nxt"] - LOOP0
            assert state["wo"] == 16, state
            entry = vm.p[-DE:]
            vm.p = list(entry)
            a(f"s_mov_b32 s{sIT}, 0")
            a.label("L_A_loop" + X_)
        if n < 16:
            for i in range(n, 16):
                a(f"v_mov_b32 v{S[i]}, 0")
        for i in range(n):
            vm.wait(f"K{it}_{i}")
            advance(p, False)
            k = RING + 4 * i
            a(f"v_dot2_f32_bf16 v{S[i]}, v{k}, v{Q}, 0")
            for r in range(1, 4):
                a(f"v_dot2_f32_bf16 v{S[i]}, v{k+r}, v{Q+r}, v{S[i]}")
            advance(p, True)
            if i >= 9 and n == 16:
                tr_step1(a, S, i - 9)
                done.append(i - 9)
            p += 1
        transpose_reduce(a, S, T, sM1, sM0, done)
        s0 = S[0]
        bf16r(a, s0)
        a(f"v_mul_f32 v{s0}, {SCALE}, v{s0}")
        bf16r(a, s0)
        a(f"v_mul_f32 v{s0}, {LOG2E}, v{s0}")
        if n < 16:
            a(f"s_sub_u32 s3, s{sN}, 64")
            a(f"v_cmp_gt_u32 vcc, s3, v{VM_}")
            a(f"v_cndmask_b32 v{s0}, v{VNI}, v{s0}, vcc")
        a(f"v_max_f32 v{T2}, v{s0}, v{MRUN}")
        wave_reduce(a, "v_max_f32", T2, T3)
        a(f"v_sub_f32 v{T3}, v{MRUN}, v{T2}")
        a(f"v_sub_f32 v{T4}, v{s0}, v{T2}")
        a(f"v_exp_f32 v{T3}, v{T3}")
        a(f"v_exp_f32 v{T4}, v{T4}")
        a(f"v_mov_b32 v{MRUN}, v{T2}")
        a(f"v_cvt_pk_bf16_f32 v{PP}, v{T4}, v{T4}")
        a(f"v_fma_f32 v{LRUN}, v{LRUN}, v{T3}, v{T4}")
        for r in range(4):
            a(f"v_mul_f32 v{ACC+r}, v{ACC+r}, v{T3}")
        for i in range(n):
            bc = mstep(PP, i, None, None)
            vm.wait(f"V{it}_{i}")
            advance(p, False)
            a(f"v_mfma_f32_16x16x32_bf16 {vr(ACC,4)}, {vr(bc,4)}, {ar(4*i,4)}, {vr(ACC,4)}")
            advance(p, True)
            p += 1
    assert [t.replace("3_", "2_") for t in vm.p] == entry, (vm.p, entry)
    a(f"s_mov_b32 s{sCUR}, s{sNXT}")
    a(f"s_add_u32 s{sNXT}, s{sNXT}, 0x4000")
    a(f"s_add_u32 s{sIT}, s{sIT}, 1")
    a(f"s_cmp_lt_u32 s{sIT}, 3")
    a("s_cbranch_scc1 L_A_loop" + X_)
    st.mark()
    lg.issue("w", f"ds_write_b128 v{VST}, {vr(ACC,4)} offset:8192")
    wave_reduce(a, "v_add_f32", LRUN, T3)
    a(f"s_lshl_b32 s3, s{sW}, 3")
    a(f"v_mov_b32 v{T}, s3")
    lg.issue("w", f"ds_write_b64 v{T}, {vr(MRUN,2)} offset:12288")
    a(f"s_lshl_b32 s3, s{sHF}, 8")
    a(f"v_and_b32 v{T2}, 63, v0")
    a(f"v_lshl_add_u32 v{T3}, v{T2}, 2, s3")
    a(f"v_cmp_lt_u32 vcc, 1, v{VG}")
    a(f"v_mov_b32 v{T}, 0")
    lg.drain()
    a("s_barrier")
    vm.drain()
    ML = 64
    OV = 80
    for k in range(4):
        lg.issue("ml", f"ds_read_b128 {vr(ML+4*k,4)}, v{T} offset:{12288+16*k}")
    for k in range(4):
        lg.issue("o", f"ds_read2st64_b32 {vr(OV+2*k,2)}, v{T3} offset0:{32+4*k} offset1:{34+4*k}")
    lg.wait("ml")
    MA, MB, MALL, LA, LB = 32, 33, 34, 35, 36
    a(f"v_max3_f32 v{MA}, v{ML}, v{ML+2}, v{ML+4}")
    a(f"v_max3_f32 v{MB}, v{ML+8}, v{ML+10}, v{ML+12}")
    a(f"v_max_f32 v{MA}, v{MA}, v{ML+6}")
    a(f"v_max_f32 v{MB}, v{MB}, v{ML+14}")
    a(f"v_max_f32 v{MALL}, v{MA}, v{MB}")
    a(f"v_cndmask_b32 v{MA}, v{MALL}, v{MA}, {sMK}")
    a(f"v_cndmask_b32 v{MB}, v{MALL}, v{MB}, {sMK}")
    for w in range(8):
        a(f"v_sub_f32 v{ML+2*w}, v{ML+2*w}, v{MA if w < 4 else MB}")
    for w in range(8):
        a(f"v_exp_f32 v{ML+2*w}, v{ML+2*w}")
    lg.wait("o")
    OA = [40, 41]
    for w in range(8):
        d = OA[w >> 2]
        if w % 4 == 0:
            a(f"v_mul_f32 v{d}, v{OV+w}, v{ML+2*w}")
        else:
            a(f"v_fmac_f32 v{d}, v{OV+w}, v{ML+2*w}")
    a(f"v_fmac_f32 v{OA[0]}, s{sNM}, v{OA[1]}")
    a(f"v_cvt_pk_bf16_f32 v{X}, v{OA[0]}, v{OA[1]}")
    for w in range(8):
        L = LA if w < 4 else LB
        if w % 4 == 0:
            a(f"v_mul_f32 v{L}, v{ML+2*w}, v{ML+2*w+1}")
        else:
            a(f"v_fmac_f32 v{L}, v{ML+2*w}, v{ML+2*w+1}")
    a(f"v_fmac_f32 v{LA}, s{sNM}, v{LB}")
    a(f"v_cndmask_b32 v{T4}, v{MA}, v{MB}, vcc")
    a(f"v_cndmask_b32 v{T5}, v{LA}, v{LB}, vcc")
    for i in range(16):
        vpat2(a, SEL, ACC, X, i, ar(WA + 4 * i, 4), i == 0, BC + 4 * (i & 1), T2 + (i & 1))
    a("s_mov_b32 exec_hi, s52")
    a(f"global_store_dwordx4 v{VGS}, {vr(ACC,4)}, s[{sWS}:{sWS+1}] sc1")
    a(f"s_cmp_lg_u32 s{sW}, 0")
    a("s_cbranch_scc1 L_A_noml" + X_)
    a("s_and_b32 exec_hi, s52, 1")
    a("s_mov_b32 exec_lo, 1")
    a(f"global_store_dwordx2 v{VGM}, {vr(T4,2)}, s[{sWS}:{sWS+1}] sc1")
    a.label("L_A_noml" + X_)
    st.mark()
    st.dump(sWS, sW)
    a("s_endpgm")


def gen_B(a, P):
    vm = Cnt(a, "vmcnt", 63)
    lg = Cnt(a, "lgkmcnt", 15)
    st = Stamps(a, P["stamps"], 64)
    sX, sCK, sWQ, sWUK, sWUV, sWO, sGW, sOUT, sDBG, sWS = 4, 8, 10, 12, 14, 16, 18, 52, 54, 56
    rA, rB, rC = 24, 28, 32
    sW, sH, sGRP, sU, sT, sT2, sOFF, sIT, sTO, sWP, sSTEP = 36, 37, 38, 39, 40, 41, 42, 43, 48, 49, 50
    sM1, sM0 = "s[44:45]", "s[46:47]"
    VL, VM_, VG, VZ = 1, 2, 3, 4
    SEL, XP, BC, ACC4 = 8, 12, 16, 24
    T, T2, T3, T4 = 28, 29, 30, 31
    VCK, VSW, VSR, VTR, VXW = 5, 6, 7, 14, 15
    WSZ = 0x400000 - 0x2000 + 256
    st.mark()
    a("s_load_dwordx2 s[4:5], s[0:1], 0")
    a("s_load_dwordx8 s[8:15], s[0:1], 48")
    a("s_load_dwordx4 s[16:19], s[0:1], 80")
    a("s_load_dwordx4 s[52:55], s[0:1], 96")
    a("s_load_dwordx2 s[56:57], s[0:1], 112")
    a("v_lshrrev_b32 v1, 6, v0")
    a(f"v_readfirstlane_b32 s{sW}, v1")
    a(f"s_and_b32 s{sT}, s2, 7")
    a(f"s_lshr_b32 s{sT2}, s2, 3")
    a(f"s_lshl_b32 s{sH}, s{sT}, 2")
    a(f"s_add_u32 s{sH}, s{sH}, s{sT2}")
    a(f"s_lshr_b32 s{sGRP}, s{sW}, 2")
    a(f"s_and_b32 s{sWP}, s{sW}, 3")
    a(f"s_lshl_b32 s{sU}, s{sH}, 1")
    a(f"s_add_u32 s{sU}, s{sU}, s{sGRP}")
    a(f"v_and_b32 v{VL}, 63, v0")
    a(f"v_and_b32 v{VM_}, 15, v0")
    a(f"v_bfe_u32 v{VG}, v0, 4, 2")
    a(f"v_mov_b32 v{VZ}, 0")
    a(f"s_lshl_b32 s3, s{sW}, 6")
    a(f"v_lshl_add_u32 v{T}, v{VG}, 4, s3")
    a(f"v_add_lshl_u32 v{T2}, v{T}, v{VM_}, 1")
    a(f"v_lshlrev_b32 v{T}, 13, v{T}")
    a(f"v_lshl_add_u32 v{VTR}, v{VM_}, 4, v{T}")
    a(f"v_add_u32 v{T}, s3, v{VG}")
    a(f"v_lshlrev_b32 v{T}, 13, v{T}")
    a(f"v_lshl_add_u32 v{T4}, v{VM_}, 4, v{T}")
    a(f"s_lshl_b32 s3, s{sWP}, 8")
    a(f"v_lshl_add_u32 v{T}, v{VM_}, 4, s3")
    a(f"v_lshl_add_u32 v{VCK}, v{VG}, 10, v{T}")
    a(f"v_lshrrev_b32 v{T3}, 1, v{VG}")
    a(f"v_lshlrev_b32 v{T3}, 11, v{T3}")
    a(f"v_lshl_add_u32 v{T3}, v{VM_}, 5, v{T3}")
    a(f"v_and_b32 v36, 1, v{VG}")
    a(f"v_lshl_add_u32 v{T3}, v36, 4, v{T3}")
    a(f"s_lshl_b32 s3, s{sU}, 12")
    a(f"s_lshl_b32 s{sT}, s{sWP}, 9")
    a(f"s_add_u32 s3, s3, s{sT}")
    a(f"s_add_u32 s3, s3, {WS_BOUT}")
    a(f"v_add_u32 v{T3}, s3, v{T3}")
    for r in range(4):
        a(f"v_mov_b32 v{32+r}, -1")
    a(f"s_lshl_b32 s{sT2}, s{sH}, 8")
    a(f"s_lshl_b32 s{sT}, s{sU}, 18")
    a(f"s_mov_b32 s{sOFF}, 0")
    a("s_waitcnt lgkmcnt(0)")
    a(f"global_store_dwordx4 v{T3}, {vr(32,4)}, s[{sWS}:{sWS+1}] sc1")
    vm.issue("x", f"global_load_ushort v{XP}, v{T2}, s[{sX}:{sX+1}]")
    vm.issue("x", f"global_load_ushort v{XP+1}, v{T2}, s[{sX}:{sX+1}] offset:1024")
    srd(a, rA, sWQ, f"s{sT2}", WSZ)
    for i in range(16):
        vm.issue(f"wq{i}", f"buffer_load_dwordx4 {ar(4*i,4)}, v{VTR}, s[{rA}:{rA+3}], s{sOFF} offen nt")
        if i < 15:
            a(f"s_add_u32 s{sOFF}, s{sOFF}, 0x2000")
    srd(a, rB, sWUK, f"s{sT2}", WSZ)
    a(f"s_mov_b32 s{sOFF}, 0")
    UK = 64
    for i in range(16):
        vm.issue(f"uk{i}", f"buffer_load_dwordx4 {vr(UK+4*i,4)}, v{T4}, s[{rB}:{rB+3}], s{sOFF} offen nt")
        if i < 15:
            a(f"s_add_u32 s{sOFF}, s{sOFF}, 0x8000")
    srd(a, rC, sCK, f"s{sT}", 0x40000)
    STG = [64, 96]

    def ckload(buf, i):
        vm.issue(f"ck{buf}", f"buffer_load_dwordx4 {ar(STG[buf]+4*i,4)}, v{VCK}, s[{rC}:{rC+3}], s{sTO} offen nt")
        a(f"s_add_u32 s{sTO}, s{sTO}, s{sSTEP}")

    a(f"s_mov_b32 s{sTO}, 0")
    a(f"s_mov_b32 s{sSTEP}, 0x1000")
    make_sel(a, SEL, VM_, T, T2, T3)
    a("s_mov_b32 s44, 0xcccccccc")
    a("s_mov_b32 s45, 0xcccccccc")
    a("s_mov_b32 s46, 0xaaaaaaaa")
    a("s_mov_b32 s47, 0xaaaaaaaa")
    a(f"v_lshrrev_b32 v{T}, 1, v{VG}")
    a(f"v_lshlrev_b32 v{T}, 9, v{T}")
    a(f"v_lshl_add_u32 v{T}, v{VM_}, 5, v{T}")
    a(f"v_and_b32 v{T2}, 1, v{VG}")
    a(f"v_lshl_add_u32 v{T}, v{T2}, 4, v{T}")
    a(f"s_lshl_b32 s3, s{sW}, 10")
    a(f"s_add_u32 s3, s3, {LDS_XCH}")
    a(f"v_add_u32 v{VXW}, s3, v{T}")
    vm.wait("x")
    a(f"v_lshl_or_b32 v{XP}, v{XP+1}, 16, v{XP}")
    for i in range(16):
        vm.wait(f"wq{i}")
        vpat2(a, SEL, ACC4, XP, i, ar(4 * i, 4), i == 0, BC + 4 * (i & 1), T + (i & 1))
        if i >= 16 - P["ck_early"]:
            pass
    lg.issue("w", f"ds_write_b128 v{VXW}, {vr(ACC4,4)}")
    for j in range(P["ck_pre"]):
        ckload(j // 8, j % 8)
    a(f"v_and_b32 v{T}, 255, v0")
    a(f"v_lshlrev_b32 v{T2}, 2, v{T}")
    a(f"v_add_u32 v{T2}, {LDS_XCH}, v{T2}")
    a(f"v_lshlrev_b32 v{T3}, 1, v{T}")
    a(f"v_add_u32 v{T3}, {LDS_XCH+8192}, v{T3}")
    a(f"v_lshlrev_b32 v{T}, 4, v{VM_}")
    a(f"v_add_u32 v{T}, {LDS_XCH+8192}, v{T}")
    lg.drain()
    a("s_barrier")
    for k in range(4):
        lg.issue("r", f"ds_read2st64_b32 {vr(32+2*k,2)}, v{T2} offset0:{8*k} offset1:{8*k+4}")
    lg.drain()
    a(f"v_pk_add_f32 {vr(32,2)}, {vr(32,2)}, {vr(34,2)}")
    a(f"v_pk_add_f32 {vr(36,2)}, {vr(36,2)}, {vr(38,2)}")
    a(f"v_pk_add_f32 {vr(32,2)}, {vr(32,2)}, {vr(36,2)}")
    a(f"v_add_f32 v32, v32, v33")
    a(f"v_cvt_pk_bf16_f32 v32, v32, v32")
    lg.issue("w", f"ds_write_b16 v{T3}, v32")
    lg.drain()
    a("s_barrier")
    QB = 16
    lg.issue("r", f"ds_read_b128 {vr(QB,4)}, v{T}")
    lg.issue("r", f"ds_read_b128 {vr(QB+4,4)}, v{T} offset:256")
    lg.drain()
    S0 = list(range(32, 48))
    S1 = list(range(48, 64))
    for i in range(16):
        vm.wait(f"uk{i}")
        for b, S in ((0, S0), (1, S1)):
            a(f"v_dot2_f32_bf16 v{S[i]}, v{UK+4*i}, v{QB+4*b}, 0")
            for r in range(1, 4):
                a(f"v_dot2_f32_bf16 v{S[i]}, v{UK+4*i+r}, v{QB+4*b+r}, v{S[i]}")
    transpose_reduce(a, S0, T, sM1, sM0)
    transpose_reduce(a, S1, T, sM1, sM0)
    a(f"v_cvt_pk_bf16_f32 v{T2}, v{S0[0]}, v{S1[0]}")
    a(f"s_lshl_b32 s3, s{sH}, 3")
    a(f"s_add_u32 s3, s3, s{sW}")
    a(f"s_lshl_b32 s3, s3, 6")
    a(f"v_lshl_add_u32 v{T}, v{VM_}, 2, v{VG}")
    a(f"v_add_lshl_u32 v{T}, v{T}, s3, 1")
    a(f"v_add_u32 v{T3}, 0x8000, v{T}")
    vm.issue("st", f"global_store_short v{T}, v{T2}, s[{sWS}:{sWS+1}] sc1")
    vm.issue("st", f"global_store_short_d16_hi v{T3}, v{T2}, s[{sWS}:{sWS+1}] sc1")
    st.mark()
    signal(a, "L_B_sig1", VZ, T, sDBG, C1, sW, 0)
    vm.p = []
    for j in range(P["ck_pre"], P["ck_mid"]):
        ckload(j // 8, j % 8)
    AF, QF = 32, 0
    SR, XT, PF = 32, 48, 16
    MRUN, LRUN, ALPHA = 24, 25, 26
    ACC = 64
    VUV = 27
    a(f"v_mov_b32 v{VUV}, v{VTR}")
    a(f"v_mul_u32_u24 v{T}, {STG_STRIDE}, v{VG}")
    a(f"v_lshl_add_u32 v{T}, v{VM_}, 4, v{T}")
    a(f"s_mul_i32 s3, s{sW}, {STG_WAVE}")
    a(f"v_add_u32 v{VSW}, s3, v{T}")
    a(f"v_and_b32 v{T}, 16, v{VL}")
    a(f"v_and_b32 v{T2}, 3, v{VL}")
    a(f"v_lshl_add_u32 v{T}, v{T2}, 2, v{T}")
    a(f"v_bfe_u32 v{T2}, v{VL}, 3, 1")
    a(f"v_lshl_add_u32 v{T}, v{T2}, 1, v{T}")
    a(f"v_bfe_u32 v{T2}, v{VL}, 2, 1")
    a(f"v_add_u32 v{T}, v{T}, v{T2}")
    a(f"v_mul_u32_u24 v{T}, {STG_STRIDE}, v{T}")
    a(f"v_lshrrev_b32 v{T2}, 5, v{VL}")
    a(f"v_lshl_add_u32 v{T}, v{T2}, 4, v{T}")
    a(f"v_add_u32 v{VSR}, s3, v{T}")
    a(f"v_and_b32 v{T}, 12, v{VM_}")
    a(f"v_add_u32 v{T}, v{T}, v{T2}")
    a(f"v_mul_u32_u24 v{T}, {STG_STRIDE}, v{T}")
    a(f"v_and_b32 v{T3}, 1, v{VG}")
    a(f"v_lshl_add_u32 v{T}, v{T3}, 5, v{T}")
    a(f"v_and_b32 v{T3}, 3, v{VM_}")
    a(f"v_lshl_add_u32 v{T}, v{T3}, 3, v{T}")
    a(f"v_add_u32 v{VTR}, s3, v{T}")
    VXR, VXWR = 12, 13
    VXS, VPW, VAW, VAR = 8, 9, 10, 11
    a(f"s_lshl_b32 s3, s{sGRP}, 15")
    a(f"s_add_u32 s3, s3, {LDS_XCH}")
    a(f"v_lshlrev_b32 v{T}, 3, v{T2}")
    a(f"v_xor_b32 v{T}, v{T}, v{VL}")
    a(f"v_lshl_add_u32 v{VXR}, v{T}, 4, s3")
    a(f"s_add_u32 s{sT}, s3, 18432")
    a(f"v_and_b32 v{T}, 31, v{VL}")
    a(f"v_lshl_add_u32 v{VAR}, v{T}, 2, s{sT}")
    a(f"v_and_b32 v{T}, 7, v{VL}")
    a(f"s_lshl_b32 s{sT2}, s{sWP}, 3")
    a(f"v_add_u32 v{T}, s{sT2}, v{T}")
    a(f"v_lshl_add_u32 v{VAW}, v{T}, 2, s{sT}")
    a(f"v_bfe_u32 v{T3}, v{VL}, 3, 1")
    a(f"v_lshl_add_u32 v{T}, v{T3}, 5, v{T}")
    a(f"v_and_b32 v{T3}, 8, v{VL}")
    a(f"v_xor_b32 v{T}, v{T}, v{T3}")
    a(f"v_lshl_add_u32 v{T}, v{T}, 4, s3")
    a(f"v_lshl_add_u32 v{VXS}, v{VG}, 10, v{T}")
    a(f"v_lshrrev_b32 v{T3}, 1, v{VG}")
    a(f"v_lshl_add_u32 v{T}, v{T3}, 10, v{T}")
    a(f"v_and_b32 v{T3}, 1, v{VG}")
    a(f"v_lshl_add_u32 v{VPW}, v{T3}, 3, v{T}")
    a(f"s_lshl_b32 s3, s{sWP}, 12")
    a(f"v_add_u32 v{VXWR}, s3, v{VXR}")
    a(f"v_and_b32 v{T}, 31, v{VL}")
    a(f"v_lshlrev_b32 v{T}, 10, v{T}")
    a(f"v_lshl_add_u32 v{T}, v{T2}, 4, v{T}")
    a(f"s_lshr_b32 s{sT}, s{sH}, 4")
    a(f"s_lshl_b32 s{sT}, s{sT}, 15")
    a(f"s_lshl_b32 s3, s{sWP}, 8")
    a(f"s_add_u32 s3, s3, s{sT}")
    a(f"v_add_u32 v{T4}, s3, v{T}")
    for r in range(64):
        a(f"v_mov_b32 v{ACC+r}, 0")
    a(f"v_mov_b32 v{MRUN}, {NEGINF}")
    a(f"v_mov_b32 v{LRUN}, 0")
    a(f"s_mov_b32 s{sIT}, 0")
    L1 = P["l1"]

    def afreg(s):
        return vr(XT + 4 * s, 4) if s < 4 else ar(AF + 4 * (s - 4), 4)

    def stage_w(buf):
        for i in range(8):
            lg.issue("sw", f"ds_write_b128 v{VSW}, {ar(STG[buf]+4*i,4)} offset:{i*4*STG_STRIDE}")

    def af_read(s0, s1):
        for s in range(s0, s1):
            lg.issue(f"af{s}", f"ds_read_b128 {afreg(s)}, v{VSR} offset:{32*s}")

    def trread(cb):
        for t in range(2):
            for sec in range(2):
                lg.issue(f"tr{cb}{t}", f"ds_read_b64_tr_b16 {ar(AF+8*cb+4*t+2*sec,2)}, v{VTR} offset:{(16*t+2*sec)*STG_STRIDE+cb*64}")

    vm.wait("ck0")
    stage_w(0)
    af_read(0, 8)
    lg.drain()
    poll(a, "L_B_p1", VZ, T, sDBG, C1, NB, sW, sT, P["sleep1"])
    for s in range(8):
        vm.issue("qf", f"global_load_dwordx4 {ar(QF+4*s,4)}, v{T4}, s[{sWS}:{sWS+1}] offset:{32*s} sc1")
    assert P["ck_mid"] >= 8
    for j in range(P["ck_mid"], 16):
        ckload(j // 8, j % 8)
    for i in range(L1):
        ckload(0, i)
    vm.wait("qf")
    st.mark()
    vm.p = ["ck1"] * 8 + ["ck0"] * L1
    lg.p = [f"af{s}" for s in range(4, 8)]
    entry = list(vm.p)
    lentry = list(lg.p)
    XS = SR

    def pm(k, on):
        if P.get("bprof") and on:
            a(f"s_memtime s[{64+2*k}:{65+2*k}]")
            a("s_waitcnt lgkmcnt(0)")
            lg.p = []

    def tile(p, switch, last, prof=False):
        pm(0, prof)
        for s in range(8):
            lg.wait(f"af{s}")
            c = "0" if s == 0 else vr(SR, 16)
            a(f"v_mfma_f32_32x32x16_bf16 {vr(SR,16)}, {afreg(s)}, {ar(QF+4*s,4)}, {c}")
        for i in range(L1, 8):
            ckload(p, i)
        for q in range(4):
            lg.issue("xw", f"ds_write_b128 v{VXWR}, {vr(SR+4*q,4)} offset:{q*1024}")
        lg.drain()
        pm(1, prof)
        a("s_barrier")
        pm(2, prof)
        for w in range(4):
            lg.issue(f"x{w}", f"ds_read_b128 {vr(XS+4*w,4)}, v{VXS} offset:{w*4096}")
        trread(0)
        trread(1)
        if switch:
            a(f"s_cmp_lg_u32 s{sIT}, 2")
            a("s_cbranch_scc1 L_B_nosw")
            a(f"s_lshl_b32 s{sT2}, s{sH}, 8")
            srd(a, rC, sWUV, f"s{sT2}", WSZ)
            a(f"v_swap_b32 v{VCK}, v{VUV}")
            a(f"s_mov_b32 s{sTO}, 0")
            a(f"s_mov_b32 s{sSTEP}, 0x2000")
            a.label("L_B_nosw")
        lg.wait("x1")
        for k in (0, 2):
            a(f"v_pk_add_f32 {vr(XS+k,2)}, {vr(XS+k,2)}, {vr(XS+4+k,2)}")
        lg.wait("x3")
        for k in (0, 2):
            a(f"v_pk_add_f32 {vr(XS+8+k,2)}, {vr(XS+8+k,2)}, {vr(XS+12+k,2)}")
        for k in (0, 2):
            a(f"v_pk_add_f32 {vr(XS+k,2)}, {vr(XS+k,2)}, {vr(XS+8+k,2)}")
        for rnd in range(2):
            for k in range(2):
                a(f"v_cvt_pk_bf16_f32 v{XS+4+k}, v{XS+2*k}, v{XS+2*k+1}")
            mul = SCALE if rnd == 0 else LOG2E
            for k in range(2):
                a(f"v_lshlrev_b32 v{XS+2*k}, 16, v{XS+4+k}")
                a(f"v_and_b32 v{XS+2*k+1}, 0xffff0000, v{XS+4+k}")
            for k in range(4):
                a(f"v_mul_f32 v{XS+k}, {mul}, v{XS+k}")
        a(f"v_max3_f32 v{T}, v{XS}, v{XS+1}, v{MRUN}")
        a(f"v_max3_f32 v{T}, v{XS+2}, v{XS+3}, v{T}")
        a(f"v_max_f32_dpp v{T}, v{T}, v{T} {dpp('row_ror:8')}")
        a(f"v_mov_b32 v{T2}, v{T}")
        a(f"v_permlane16_swap_b32 v{T}, v{T2}")
        a(f"v_max_f32 v{T}, v{T}, v{T2}")
        a(f"v_mov_b32 v{T2}, v{T}")
        a(f"v_permlane32_swap_b32 v{T}, v{T2}")
        a(f"v_max_f32 v{T}, v{T}, v{T2}")
        a(f"v_sub_f32 v{T2}, v{MRUN}, v{T}")
        for k in range(4):
            a(f"v_sub_f32 v{XS+k}, v{XS+k}, v{T}")
        a(f"v_exp_f32 v{T2}, v{T2}")
        for k in range(4):
            a(f"v_exp_f32 v{XS+k}, v{XS+k}")
        a(f"v_mov_b32 v{MRUN}, v{T}")
        for k in range(2):
            a(f"v_cvt_pk_bf16_f32 v{XS+4+k}, v{XS+2*k}, v{XS+2*k+1}")
        lg.issue("pw", f"ds_write_b32 v{VAW}, v{T2}")
        lg.issue("pw", f"ds_write_b64 v{VPW}, {vr(XS+4,2)} offset:16384")
        trread(2)
        trread(3)
        a(f"v_pk_add_f32 {vr(XS,2)}, {vr(XS,2)}, {vr(XS+2,2)}")
        a(f"v_fma_f32 v{LRUN}, v{LRUN}, v{T2}, v{XS}")
        a(f"v_add_f32 v{LRUN}, v{LRUN}, v{XS+1}")
        lg.wait("pw")
        pm(3, prof)
        a("s_barrier")
        pm(4, prof)
        lg.issue("al", f"ds_read_b32 v{ALPHA}, v{VAR}")
        for t in range(2):
            lg.issue(f"pf{t}", f"ds_read_b128 {vr(PF+4*t,4)}, v{VXR} offset:{16384+t*1024}")
        if not last:
            vm.wait(f"ck{1-p}")
            stage_w(1 - p)
            af_read(0, 4)
        lg.wait("al")
        for cb in range(4):
            for k in range(16 * cb, 16 * cb + 16, 2):
                a(f"v_pk_mul_f32 {vr(ACC+k,2)}, {vr(ACC+k,2)}, {vr(ALPHA,2)} op_sel_hi:[1,0]")
            for t in range(2):
                lg.wait(f"pf{t}")
                a(f"v_mfma_f32_32x32x16_bf16 {vr(ACC+16*cb,16)}, {ar(AF+8*cb+4*t,4)}, {vr(PF+4*t,4)}, {vr(ACC+16*cb,16)}")
            if cb == 2 and not last:
                af_read(4, 8)
        if not last:
            lg.wait("af3")
            for i in range(L1):
                ckload(1 - p, i)
        pm(5, prof)
        if P.get("bprof") and prof:
            a(f"v_mov_b32 v{T}, v{ACC+63}")
        pm(6, prof)

    a.label("L_B_loop")
    tile(0, False, False, prof=True)
    tile(1, True, False)
    assert vm.p == entry and (lg.p == lentry), (vm.p, lg.p)
    a(f"s_add_u32 s{sIT}, s{sIT}, 1")
    a(f"s_cmp_lt_u32 s{sIT}, 3")
    a("s_cbranch_scc1 L_B_loop")
    tile(0, False, False)
    tile(1, False, True)
    assert lg.p == []
    st.mark()
    UV = 64
    a(f"s_lshl_b32 s{sT2}, s{sH}, 17")
    a(f"s_lshl_b32 s3, s{sGRP}, 16")
    a(f"s_add_u32 s{sT2}, s{sT2}, s3")
    srd(a, rA, sWO, f"s{sT2}", 0x10000)
    a(f"s_lshl_b32 s3, s{sWP}, 8")
    a(f"v_lshl_add_u32 v{T4}, v{VM_}, 4, s3")
    a(f"v_lshl_add_u32 v{T4}, v{VG}, 14, v{T4}")

    def woloads():
        a(f"s_mov_b32 s{sOFF}, 0")
        for j in range(16):
            a(f"buffer_load_dwordx4 {ar(4*j,4)}, v{T4}, s[{rA}:{rA+3}], s{sOFF} offen offset:{(j%4)*1024} nt")
            if j % 4 == 3 and j < 15:
                a(f"s_add_u32 s{sOFF}, s{sOFF}, 0x1000")

    a(f"s_cmp_lg_u32 s{sW}, 0")
    a("s_cbranch_scc1 L_B_wo0")
    woloads()
    a.label("L_B_wo0")
    a(f"v_add_f32_dpp v{LRUN}, v{LRUN}, v{LRUN} {dpp('row_ror:8')}")
    a(f"v_mov_b32 v{T2}, v{LRUN}")
    a(f"v_permlane16_swap_b32 v{LRUN}, v{T2}")
    a(f"v_add_f32 v{LRUN}, v{LRUN}, v{T2}")
    a(f"v_mov_b32 v{T2}, v{LRUN}")
    a(f"v_permlane32_swap_b32 v{LRUN}, v{T2}")
    a(f"v_add_f32 v{LRUN}, v{LRUN}, v{T2}")
    a(f"v_lshrrev_b32 v{T2}, 5, v{VL}")
    a(f"v_and_b32 v{T3}, 31, v{VL}")
    a(f"v_mul_u32_u24 v{T3}, {STG_STRIDE}, v{T3}")
    a(f"v_lshl_add_u32 v{T3}, v{T2}, 3, v{T3}")
    a(f"s_mul_i32 s3, s{sW}, {STG_WAVE}")
    a(f"v_add_u32 v{T3}, s3, v{T3}")
    for cb in range(4):
        for q in range(4):
            r = ACC + 16 * cb + 4 * q
            d = SR + 2 * ((4 * cb + q) % 8)
            a(f"v_cvt_pk_bf16_f32 v{d}, v{r}, v{r+1}")
            a(f"v_cvt_pk_bf16_f32 v{d+1}, v{r+2}, v{r+3}")
            lg.issue("tw", f"ds_write_b64 v{T3}, {vr(d,2)} offset:{cb*64+q*16}")
    for i in range(8):
        lg.issue(f"tr{i}", f"ds_read_b128 {vr(ACC+4*i,4)}, v{VSW} offset:{i*4*STG_STRIDE}")
    a(f"s_lshl_b32 s{sT}, s{sU}, 15")
    a(f"s_add_u32 s{sT}, s{sT}, {WS_BPART}")
    srd(a, rC, sWS, f"s{sT}", 0x8000)
    a(f"v_and_b32 v{T}, 7, v{VL}")
    a(f"s_lshl_b32 s3, s{sU}, 2")
    a(f"s_add_u32 s3, s3, s{sWP}")
    a(f"s_lshl_b32 s3, s3, 6")
    a(f"s_add_u32 s3, s3, {WS_BML}")
    a(f"v_lshl_add_u32 v{T}, v{T}, 3, s3")
    a(f"global_store_dwordx2 v{T}, {vr(MRUN,2)}, s[{sWS}:{sWS+1}] sc1")
    a(f"s_mov_b32 s{sOFF}, 0")
    for i in range(8):
        lg.wait(f"tr{i}")
        a(f"buffer_store_dwordx4 {vr(ACC+4*i,4)}, v{VUV}, s[{rC}:{rC+3}], s{sOFF} offen sc1")
        if i < 7:
            a(f"s_add_u32 s{sOFF}, s{sOFF}, 0x1000")
    if P["phase"]:
        a(f"s_cmp_lg_u32 s{sGRP}, 0")
        a("s_cbranch_scc1 L_B_ph1")
        a("s_barrier")
        a.label("L_B_ph1")
    signal(a, "L_B_sig2", VZ, T2, sDBG, C2, sW, 0, keep=0)
    vm.p = []
    a(f"s_cmp_eq_u32 s{sW}, 0")
    a("s_cbranch_scc1 L_B_wo1")
    woloads()
    a.label("L_B_wo1")
    st.mark()
    a(f"s_lshl_b32 s{sT}, s{sW}, 18")
    a(f"s_lshl_b32 s3, s{sH}, 10")
    a(f"s_add_u32 s{sT}, s{sT}, s3")
    a(f"s_add_u32 s{sT}, s{sT}, {WS_BPART}")
    srd(a, rC, sWS, f"s{sT}", 0x40000)
    a(f"v_lshlrev_b32 v{VCK}, 4, v{VL}")
    a(f"v_and_b32 v{T3}, 31, v{VL}")
    a(f"s_lshl_b32 s3, s{sGRP}, 13")
    a(f"s_lshl_b32 s{sT}, s{sH}, 3")
    a(f"s_add_u32 s{sT}, s{sT}, {WS_BML}")
    a(f"s_add_u32 s3, s3, s{sT}")
    a(f"v_lshl_add_u32 v{VSW}, v{T3}, 8, s3")
    a(f"s_lshl_b32 s3, s{sW}, 11")
    a(f"s_add_u32 s3, s3, {LDS_XCH}")
    a(f"v_lshl_add_u32 v{VTR}, v{VL}, 5, s3")
    make_sel(a, SEL, VM_, T, T2, T3)
    poll(a, "L_B_p2", VZ, T, sDBG, C2, NB, sW, sT, P["sleep1"], target2=0 if P.get("skipA") else NA)
    st.mark()
    PR, OML = 64, 12
    vm.issue("oml", f"global_load_dwordx2 {vr(OML,2)}, v{VSW}, s[{sWS}:{sWS+1}] sc1")
    a(f"s_mov_b32 s{sOFF}, 0")
    for i in range(8):
        vm.issue(f"pr{i}", f"buffer_load_dwordx4 {vr(PR+4*i,4)}, v{VCK}, s[{rC}:{rC+3}], s{sOFF} offen sc1")
        if i < 7:
            a(f"s_add_u32 s{sOFF}, s{sOFF}, 0x8000")
    vm.wait("oml")
    MM, TT = 6, 7
    a(f"v_mov_b32 v{MM}, v{OML}")
    for c in ("row_ror:8", "row_ror:4", "row_ror:2", "row_ror:1"):
        a(f"v_max_f32_dpp v{MM}, v{MM}, v{MM} {dpp(c)}")
    a(f"v_mov_b32 v{TT}, v{MM}")
    a(f"v_permlane16_swap_b32 v{MM}, v{TT}")
    a(f"v_max_f32 v{MM}, v{MM}, v{TT}")
    a(f"v_sub_f32 v{OML}, v{OML}, v{MM}")
    a(f"v_exp_f32 v{OML}, v{OML}")
    a(f"v_mul_f32 v{MM}, v{OML}, v{OML+1}")
    for c in ("row_ror:8", "row_ror:4", "row_ror:2", "row_ror:1"):
        a(f"v_add_f32_dpp v{MM}, v{MM}, v{MM} {dpp(c)}")
    a(f"v_mov_b32 v{TT}, v{MM}")
    a(f"v_permlane16_swap_b32 v{MM}, v{TT}")
    a(f"v_add_f32 v{MM}, v{MM}, v{TT}")
    a(f"v_rcp_f32 v{MM}, v{MM}")
    a(f"v_mul_f32 v{OML}, v{OML}, v{MM}")
    a(f"s_lshl_b32 s3, s{sWP}, 3")
    SWT = 84
    for i in range(8):
        a(f"v_readlane_b32 s{SWT+i}, v{OML}, s3")
        if i < 7:
            a("s_add_u32 s3, s3, 1")
    OA = 32
    for i in range(8):
        vm.wait(f"pr{i}")
        for k in range(4):
            a(f"v_lshlrev_b32 v{MM}, 16, v{PR+4*i+k}")
            a(f"v_and_b32 v{TT}, 0xffff0000, v{PR+4*i+k}")
            if i == 0:
                a(f"v_mul_f32 v{OA+2*k}, s{SWT}, v{MM}")
                a(f"v_mul_f32 v{OA+2*k+1}, s{SWT}, v{TT}")
            else:
                a(f"v_fmac_f32 v{OA+2*k}, s{SWT+i}, v{MM}")
                a(f"v_fmac_f32 v{OA+2*k+1}, s{SWT+i}, v{TT}")
    lg.issue("w", f"ds_write_b128 v{VTR}, {vr(OA,4)}")
    lg.issue("w", f"ds_write_b128 v{VTR}, {vr(OA+4,4)} offset:16")
    a(f"v_lshl_add_u32 v{T}, v{VG}, 4, v{VM_}")
    a(f"s_lshl_b32 s3, s{sW}, 8")
    a(f"s_add_u32 s3, s3, {LDS_XCH}")
    a(f"v_lshl_add_u32 v{T}, v{T}, 2, s3")
    lg.drain()
    a("s_barrier")
    R = 40
    for k in range(4):
        lg.issue("r", f"ds_read2st64_b32 {vr(R+2*k,2)}, v{T} offset0:{16*k} offset1:{16*k+8}")
    lg.drain()
    for b in range(2):
        a(f"v_pk_add_f32 {vr(R+4*b,2)}, {vr(R+4*b,2)}, {vr(R+4*b+2,2)}")
        a(f"v_add_f32 v{R+4*b}, v{R+4*b}, v{R+4*b+1}")
    a(f"v_cvt_pk_bf16_f32 v{XP}, v{R}, v{R+4}")
    for i in range(16):
        vpat2(a, SEL, ACC4, XP, i, ar(UV + 4 * i, 4), i == 0, BC + 4 * (i & 1), T + (i & 1))
    lg.issue("w", f"ds_write_b128 v{VXW}, {vr(ACC4,4)} offset:16384")
    a(f"v_lshl_add_u32 v{T}, v{VG}, 4, v{VM_}")
    a(f"s_lshl_b32 s3, s{sGRP}, 8")
    a(f"s_add_u32 s3, s3, {LDS_XCH+16384}")
    a(f"v_lshl_add_u32 v{T}, v{T}, 2, s3")
    lg.drain()
    a("s_barrier")
    for w in range(8):
        lg.issue("r", f"ds_read2st64_b32 {vr(R+2*w,2)}, v{T} offset0:{4*w} offset1:{4*w+2}")
    lg.drain()
    for k in range(0, 8, 2):
        a(f"v_pk_add_f32 {vr(R+k,2)}, {vr(R+k,2)}, {vr(R+8+k,2)}")
    for k in range(0, 4, 2):
        a(f"v_pk_add_f32 {vr(R+k,2)}, {vr(R+k,2)}, {vr(R+4+k,2)}")
    a(f"v_pk_add_f32 {vr(R,2)}, {vr(R,2)}, {vr(R+2,2)}")
    a(f"v_cvt_pk_bf16_f32 v{XP}, v{R}, v{R+1}")
    for i in range(16):
        vpat2(a, SEL, ACC4, XP, i, ar(4 * i, 4), i == 0, BC + 4 * (i & 1), T + (i & 1))
    a(f"v_lshrrev_b32 v{T3}, 1, v{VG}")
    a(f"v_lshlrev_b32 v{T3}, 11, v{T3}")
    a(f"v_lshl_add_u32 v{T3}, v{VM_}, 5, v{T3}")
    a(f"v_and_b32 v{T4}, 1, v{VG}")
    a(f"v_lshl_add_u32 v{T3}, v{T4}, 4, v{T3}")
    a(f"s_lshl_b32 s3, s{sU}, 12")
    a(f"s_lshl_b32 s{sT}, s{sWP}, 9")
    a(f"s_add_u32 s3, s3, s{sT}")
    a(f"s_add_u32 s3, s3, {WS_BOUT}")
    a(f"v_add_u32 v{T3}, s3, v{T3}")
    a(f"global_store_dwordx4 v{T3}, {vr(ACC4,4)}, s[{sWS}:{sWS+1}] sc1")
    vm.p = []
    if st.on:
        st.n = 5
        st.mark()
    a(f"s_cmp_lg_u32 s{sGRP}, 0")
    a("s_cbranch_scc1 L_F_end")
    sB, sCB = 38, 39
    VA, VA2, VB, VB2, VML, VX = 5, 6, 7, 8, 9, 10
    ML, AP, BP, XW, G = 12, 64, 36, 44, 46
    T, T2 = 47, 48
    a(f"s_lshr_b32 s{sB}, s{sH}, 4")
    a(f"s_and_b32 s{sCB}, s{sH}, 15")
    a(f"v_lshlrev_b32 v{T}, 2, v0")
    a(f"s_lshl_b32 s{sT}, s{sB}, 10")
    a(f"v_add_u32 v{VX}, s{sT}, v{T}")
    vm.issue("x", f"global_load_dword v{XW}, v{VX}, s[{sX}:{sX+1}]")
    vm.issue("x", f"global_load_dword v{XW+1}, v{T}, s[{sGW}:{sGW+1}]")
    a(f"v_lshrrev_b32 v{T}, 3, v0")
    a(f"v_and_b32 v{T2}, 7, v0")
    a(f"v_lshlrev_b32 v{T2}, 4, v{T2}")
    a(f"v_lshl_add_u32 v{VA}, v{T}, 14, v{T2}")
    a(f"v_lshl_add_u32 v{T2}, v{T}, 13, v{T2}")
    a(f"s_lshl_b32 s3, s{sCB}, 7")
    a(f"s_lshl_b32 s{sT}, s{sB}, 19")
    a(f"s_add_u32 s{sT}, s{sT}, s3")
    a(f"s_add_u32 s{sT}, s{sT}, {WS_APART + 0x1000}")
    a(f"v_add_u32 v{VA}, s{sT}, v{VA}")
    a(f"v_add_u32 v{VA2}, 0x2000, v{VA}")
    a(f"s_lshl_b32 s{sT}, s{sB}, 11")
    a(f"s_add_u32 s{sT}, s{sT}, s3")
    a(f"s_add_u32 s{sT}, s{sT}, {WS_BOUT}")
    a(f"v_add_u32 v{VB}, s{sT}, v{T2}")
    a(f"v_add_u32 v{VB2}, 0x1000, v{VB}")
    a(f"s_lshl_b32 s{sT}, s{sB}, 10")
    a(f"s_add_u32 s{sT}, s{sT}, {WS_AML}")
    a(f"v_lshl_add_u32 v{VML}, v{T}, 5, s{sT}")
    ws = f"s[{sWS}:{sWS+1}]"

    def fin_loads():
        vm.issue("ml", f"global_load_dwordx4 {vr(ML,4)}, v{VML}, {ws} sc1")
        vm.issue("ml", f"global_load_dwordx4 {vr(ML+4,4)}, v{VML}, {ws} offset:16 sc1")
        for sp in range(4):
            for hf in range(2):
                vm.issue(f"a{sp}", f"global_load_dwordx4 {vr(AP+8*sp+4*hf,4)}, v{VA if sp < 2 else VA2}, {ws} offset:{(sp&1)*4096+hf*2048-4096} sc1")
        vm.issue("b", f"global_load_dwordx4 {vr(BP,4)}, v{VB}, {ws} sc1")
        vm.issue("b", f"global_load_dwordx4 {vr(BP+4,4)}, v{VB2}, {ws} sc1")

    fin_loads()
    vm.wait("x")
    a(f"v_lshlrev_b32 v{T}, 16, v{XW}")
    a(f"v_lshlrev_b32 v{T2}, 16, v{XW+1}")
    a(f"v_and_b32 v{XW}, 0xffff0000, v{XW}")
    a(f"v_and_b32 v{XW+1}, 0xffff0000, v{XW+1}")
    a(f"v_mul_f32 v{T}, v{T}, v{T2}")
    a(f"v_mul_f32 v{T2}, v{XW}, v{XW+1}")
    a(f"v_cvt_pk_bf16_f32 v{T}, v{T}, v{T2}")
    a(f"v_lshlrev_b32 v{T2}, 16, v{T}")
    a(f"v_and_b32 v{T}, 0xffff0000, v{T}")
    a(f"v_add_f32 v{G}, v{T}, v{T2}")
    wave_reduce(a, "v_add_f32", G, T)
    a(f"s_lshl_b32 s3, s{sW}, 2")
    a(f"v_mov_b32 v{T}, s3")
    lg.issue("w", f"ds_write_b32 v{T}, v{G} offset:2048")
    lg.drain()
    a("s_barrier")
    GG = 50
    lg.issue("g", f"ds_read_b128 {vr(GG,4)}, v{VZ} offset:2048")
    lg.drain()
    a(f"v_pk_add_f32 {vr(GG,2)}, {vr(GG,2)}, {vr(GG+2,2)}")
    a(f"v_add_f32 v{G}, v{GG}, v{GG+1}")
    bf16r(a, G)
    a(f"v_mul_f32 v{G}, 0xbfb8aa3b, v{G}")
    a(f"v_exp_f32 v{G}, v{G}")
    a(f"v_add_f32 v{G}, 1.0, v{G}")
    a(f"v_rcp_f32 v{G}, v{G}")
    bf16r(a, G)
    a(f"v_sub_f32 v{GG}, 1.0, v{G}")
    bf16r(a, GG)
    a(f"v_and_b32 v{T}, 7, v0")
    a(f"v_lshrrev_b32 v{T2}, 4, v0")
    a(f"v_lshl_add_u32 v{T}, v{T}, 2, v{T2}")
    a(f"s_lshl_b32 s3, s{sH}, 6")
    a(f"v_lshl_add_u32 v{VX}, v{T}, 1, s3")
    a(f"s_mov_b32 s{sT}, 0")
    a.label("L_F_chk")
    vm.drain()
    regs = list(range(ML, ML + 8)) + list(range(BP, BP + 8)) + ([] if P.get("skipA") else list(range(AP, AP + 32)))
    if P.get("skipA"):
        regs = regs[8:]
    a(f"v_max_u32 v{T}, v{regs[0]}, v{regs[1]}")
    a(f"v_max_u32 v{T2}, v{regs[2]}, v{regs[3]}")
    for k in range(4, len(regs), 4):
        a(f"v_max3_u32 v{T}, v{regs[k]}, v{regs[k+1]}, v{T}")
        a(f"v_max3_u32 v{T2}, v{regs[k+2]}, v{regs[k+3]}, v{T2}")
    a(f"v_max_u32 v{T}, v{T}, v{T2}")
    a(f"v_cmp_eq_u32 vcc, -1, v{T}")
    a("s_cbranch_vccz L_F_go")
    a(f"s_add_u32 s{sT}, s{sT}, 1")
    a(f"s_cmp_ge_u32 s{sT}, 0x8000")
    a("s_cbranch_scc1 L_F_go")
    a("s_mov_b64 exec, vcc")
    a(f"s_sleep {P['sleep3']}")
    fin_loads()
    vm.p = []
    a("s_branch L_F_chk")
    a.label("L_F_go")
    a("s_mov_b64 exec, -1")
    a(f"v_max3_f32 v{T}, v{ML}, v{ML+2}, v{ML+4}")
    a(f"v_max_f32 v{T}, v{T}, v{ML+6}")
    for sp in range(4):
        a(f"v_sub_f32 v{ML+2*sp}, v{ML+2*sp}, v{T}")
    for sp in range(4):
        a(f"v_exp_f32 v{ML+2*sp}, v{ML+2*sp}")
    a(f"v_mul_f32 v{T}, v{ML}, v{ML+1}")
    for sp in range(1, 4):
        a(f"v_fmac_f32 v{T}, v{ML+2*sp}, v{ML+2*sp+1}")
    a(f"v_rcp_f32 v{T}, v{T}")
    for sp in range(4):
        a(f"v_mul_f32 v{ML+2*sp}, v{ML+2*sp}, v{T}")
    vm.wait("a0")
    for k in (0, 2):
        a(f"v_pk_add_f32 {vr(AP+k,2)}, {vr(AP+k,2)}, {vr(AP+4+k,2)}")
    for k in range(4):
        a(f"v_mul_f32 v{AP+k}, v{AP+k}, v{ML}")
    for sp in range(1, 4):
        vm.wait(f"a{sp}")
        for k in (0, 2):
            a(f"v_pk_add_f32 {vr(AP+8*sp+k,2)}, {vr(AP+8*sp+k,2)}, {vr(AP+8*sp+4+k,2)}")
        for k in range(4):
            a(f"v_fmac_f32 v{AP+k}, v{AP+8*sp+k}, v{ML+2*sp}")
    vm.wait("b")
    for k in range(4):
        a(f"v_add_f32 v{AP+4+k}, v{BP+k}, v{BP+4+k}")
    V = [AP + k for k in range(8)]
    for k in range(8):
        a(f"v_add_f32_dpp v{V[k]}, v{V[k]}, v{V[k]} {dpp('row_ror:8')}")
    for k in range(0, 8, 2):
        a(f"v_permlane16_swap_b32 v{V[k]}, v{V[k+1]}")
    for k in range(0, 8, 2):
        a(f"v_add_f32 v{V[k]}, v{V[k]}, v{V[k+1]}")
    for k in range(0, 8, 4):
        a(f"v_permlane32_swap_b32 v{V[k]}, v{V[k+2]}")
    a(f"v_add_f32 v{V[0]}, v{V[0]}, v{V[2]}")
    a(f"v_add_f32 v{V[1]}, v{V[4]}, v{V[6]}")
    a(f"v_lshlrev_b32 v{T}, 3, v0")
    lg.issue("w", f"ds_write_b64 v{T}, {vr(V[0],2)}")
    lg.drain()
    a("s_barrier")
    a(f"s_cmp_lg_u32 s{sW}, 0")
    a("s_cbranch_scc1 L_F_end")
    for w in range(4):
        lg.issue("r", f"ds_read_b64 {vr(AP+2*w,2)}, v{T} offset:{512*w}")
    lg.drain()
    a(f"v_pk_add_f32 {vr(AP,2)}, {vr(AP,2)}, {vr(AP+2,2)}")
    a(f"v_pk_add_f32 {vr(AP+4,2)}, {vr(AP+4,2)}, {vr(AP+6,2)}")
    a(f"v_pk_add_f32 {vr(AP,2)}, {vr(AP,2)}, {vr(AP+4,2)}")
    a(f"v_cvt_pk_bf16_f32 v{T}, v{AP}, v{AP+1}")
    a(f"v_lshlrev_b32 v{AP}, 16, v{T}")
    a(f"v_and_b32 v{AP+1}, 0xffff0000, v{T}")
    a(f"v_mul_f32 v{AP}, v{AP}, v{G}")
    a(f"v_mul_f32 v{AP+1}, v{AP+1}, v{GG}")
    a(f"v_cvt_pk_bf16_f32 v{T}, v{AP}, v{AP+1}")
    a(f"v_lshlrev_b32 v{AP}, 16, v{T}")
    a(f"v_and_b32 v{AP+1}, 0xffff0000, v{T}")
    a(f"v_add_f32 v{AP}, v{AP}, v{AP+1}")
    a(f"v_cvt_pk_bf16_f32 v{AP}, v{AP}, v{AP}")
    a("s_mov_b32 exec_lo, 0x00ff00ff")
    a("s_mov_b32 exec_hi, 0x00ff00ff")
    a(f"global_store_short v{VX}, v{AP}, s[{sOUT}:{sOUT+1}]")
    a.label("L_F_end")
    st.mark()
    st.dump(sWS, sW)
    a("s_endpgm")


def build(P):
    a = Asm()
    a.raw(f"; @launch grid=(256,1,1) block=(512,1,1) lds={LDS_TOTAL}")
    a.raw('.amdgcn_target "amdgcn-amd-amdhsa--gfx950"\n.text')
    a.raw(f".globl {NAME}\n.p2align 8\n.type {NAME},@function\n{NAME}:")
    a(f"s_cmp_lt_u32 s2, {NB}")
    a("s_cbranch_scc1 L_B_entry")
    a(f"s_cmp_lt_u32 s2, {NA+NB}")
    a("s_cbranch_scc1 L_A_entry")
    a("s_endpgm")
    a.label("L_A_entry")
    if P.get("skipA"):
        a("s_endpgm")
    if P.get("diag"):
        a("s_getreg_b32 s3, hwreg(HW_REG_XCC_ID)")
        a("s_and_b32 s3, s3, 7")
        a("s_and_b32 s4, s2, 7")
        a("s_cmp_eq_u32 s3, s4")
        a("s_cbranch_scc1 L_diag_ok")
        a("s_mov_b32 s4, 0")
        a.label("L_diag_loop")
        a("s_sleep 127")
        a("s_add_u32 s4, s4, 1")
        a("s_cmp_lt_u32 s4, 12")
        a("s_cbranch_scc1 L_diag_loop")
        a.label("L_diag_ok")
    if P["ehalf"]:
        a("s_bitcmp1_b32 s2, 0")
        a("s_cbranch_scc1 L_A_odd")
        gen_A(a, dict(P, half=P["ehalf"], hm=P["ehm"], D=P["eD"]), "_e")
        a.raw(".p2align 6")
        a.label("L_A_odd")
    gen_A(a, P)
    a.raw(".p2align 6")
    a.label("L_B_entry")
    if P.get("skipB"):
        a("s_endpgm")
    gen_B(a, P)
    a.raw('.section .rodata,"a"')
    a.raw(f""".p2align 6
.amdhsa_kernel {NAME}
  .amdhsa_next_free_vgpr 256
  .amdhsa_next_free_sgpr 102
  .amdhsa_accum_offset 128
  .amdhsa_group_segment_fixed_size 0
  .amdhsa_kernarg_size 120
  .amdhsa_user_sgpr_count 2
  .amdhsa_user_sgpr_kernarg_segment_ptr 1
  .amdhsa_system_sgpr_workgroup_id_x 1
.end_amdhsa_kernel""")
    return a.text()


DEFAULT = dict(D=4, D0=32, w_nt=1, k_first=4, stamps=0, wo_start=4, wo_every=2, sleep3=4, ck_early=0, phase=0, l1=4, l2=3, sleep1=2, half=0, hm=2, ehalf=0, ehm=2, eD=4, ck_pre=16, ck_mid=16)

if __name__ == "__main__":
    out = sys.argv[1]
    P = dict(DEFAULT)
    for kv in sys.argv[2:]:
        k, v = kv.split("=")
        P[k] = int(v)
    open(out, "w").write(build(P))
```

```python
import sys
sys.path.insert(0, "dev")
from asmlib import *
from gen import (Cnt, dpp, transpose_reduce, tr_step1, wave_reduce, bf16r, srd, LOG2E, SCALE, NEGINF,
                 WS_QABS, WS_BML, WS_AML, WS_BPART, WS_APART, WS_STAMP, STG_STRIDE, STG_WAVE)
WS_BOUT = 0x600000

NAME = "gated_mix__mha_block_cached__compressed_kv_cla__decode_kernel"
LDS_XCH = 8 * STG_WAVE
LDS_TOTAL = LDS_XCH + 65536
C1, C2, C4 = 0, 64, 68
NB, NA = 32, 224


class Stamps:
    def __init__(self, a, on, sbase):
        self.a, self.on, self.sbase, self.n = a, on, sbase, 0

    def mark(self):
        if self.on == 1:
            assert self.n < 7
            self.a(f"s_memrealtime s[{self.sbase + 2*self.n}:{self.sbase + 2*self.n + 1}]")
            self.a("s_waitcnt lgkmcnt(0)")
            self.n += 1

    def dump(self, wsreg, wave_s):
        if not self.on:
            return
        a = self.a
        a("s_getreg_b32 s3, hwreg(HW_REG_HW_ID)")
        a(f"s_mov_b32 s{self.sbase+14}, s3")
        a("s_getreg_b32 s3, hwreg(HW_REG_XCC_ID)")
        a(f"s_mov_b32 s{self.sbase+15}, s3")
        a("s_mov_b64 exec, -1")
        for i in range(16):
            a(f"v_mov_b32 v{i+4}, s{self.sbase+i}")
        a("s_lshl_b32 s3, s2, 3")
        a(f"s_add_u32 s3, s3, s{wave_s}")
        a("s_lshl_b32 s3, s3, 6")
        a(f"s_add_u32 s3, s3, {WS_STAMP}")
        a("v_mov_b32 v1, s3")
        a("s_mov_b64 exec, 1")
        for i in range(4):
            a(f"global_store_dwordx4 v1, v[{4+4*i}:{7+4*i}], s[{wsreg}:{wsreg+1}] offset:{16*i}")


def make_sel(a, SEL, VM_, T, T2, T3):
    a(f"v_mov_b32 v{T}, 0x0100")
    a(f"v_mov_b32 v{T2}, 0x0302")
    a(f"v_cmp_gt_u32 vcc, 8, v{VM_}")
    a(f"v_cndmask_b32 v{T}, v{T2}, v{T}, vcc")
    a(f"v_lshlrev_b32 v{T2}, 16, v{T}")
    a(f"v_or_b32 v{T2}, 0x0c0c, v{T2}")
    a(f"v_or_b32 v{T}, 0x0c0c0000, v{T}")
    a(f"v_and_b32 v{T3}, 1, v{VM_}")
    a(f"v_cmp_eq_u32 vcc, 1, v{T3}")
    a(f"v_cndmask_b32 v{T}, v{T}, v{T2}, vcc")
    a(f"v_bfe_u32 v{T2}, v{VM_}, 1, 2")
    a(f"v_mov_b32 v{T3}, 0x0c0c0c0c")
    for r in range(4):
        a(f"v_cmp_eq_u32 vcc, {r}, v{T2}")
        a(f"v_cndmask_b32 v{SEL+r}, v{T3}, v{T}, vcc")


def vpat2(a, SEL, acc, src, i, data, first, bc, t):
    a(f"v_mov_b32_dpp v{t}, v{src} {dpp(f'row_newbcast:{i}')}")
    for r in range(4):
        a(f"v_perm_b32 v{bc+r}, v{t}, v{t}, v{SEL+r}")
    c = "0" if first else vr(acc, 4)
    a(f"v_mfma_f32_16x16x32_bf16 {vr(acc,4)}, {vr(bc,4)}, {data}, {c}")


def poll(a, name, vaddr, vt, sdbg, off, target, sW, sT, sleep=4, target2=0):
    a(f"s_cmp_lg_u32 s{sW}, 0")
    a(f"s_cbranch_scc1 {name}_done")
    a(f"s_mov_b32 s{sT}, 0")
    a.label(f"{name}_loop")
    if target2:
        a(f"global_load_dwordx2 {vr(vt,2)}, v{vaddr}, s[{sdbg}:{sdbg+1}] offset:{off} sc1")
        a("s_waitcnt vmcnt(0)")
        a(f"v_cmp_le_u32 vcc, {target2}, v{vt+1}")
        a(f"v_cndmask_b32 v{vt}, 0, v{vt}, vcc")
    else:
        a(f"global_load_dword v{vt}, v{vaddr}, s[{sdbg}:{sdbg+1}] offset:{off} sc1")
        a("s_waitcnt vmcnt(0)")
    a(f"v_readfirstlane_b32 s3, v{vt}")
    a(f"s_cmp_ge_u32 s3, {target}")
    a(f"s_cbranch_scc1 {name}_done")
    a(f"s_sleep {sleep}")
    a(f"s_add_u32 s{sT}, s{sT}, 1")
    a(f"s_cmp_lt_u32 s{sT}, 0x8000")
    a(f"s_cbranch_scc1 {name}_loop")
    a.label(f"{name}_done")
    a("s_barrier")


def signal(a, name, vzero, vt, sdbg, off, sW, wave, keep=0):
    a(f"s_waitcnt vmcnt({keep})")
    a("s_barrier")
    a(f"s_cmp_lg_u32 s{sW}, {wave}")
    a(f"s_cbranch_scc1 {name}_skip")
    a("s_mov_b64 exec, 1")
    a(f"v_mov_b32 v{vt}, 1")
    a(f"global_atomic_add v{vzero}, v{vt}, s[{sdbg}:{sdbg+1}] offset:{off} sc1")
    a("s_mov_b64 exec, -1")
    a.label(f"{name}_skip")


def gen_A(a, P, X_=""):
    D, D0 = P["D"], P["D0"]
    WN = " nt" if P["w_nt"] else ""
    vm = Cnt(a, "vmcnt", 63)
    lg = Cnt(a, "lgkmcnt", 15)
    st = Stamps(a, P["stamps"], 64)
    VL1, VM_, VG, VO = 1, 2, 3, 4
    MASK, Q, BC, ACC = 8, 12, 16, 24
    MRUN, LRUN, PP, T = 28, 29, 30, 31
    S = list(range(32, 48))
    X, SEL, VW, T2, T3, T4, T5, VNI = 48, 52, 56, 58, 59, 60, 61, 57
    VL3, VST, VGS, VGM = 62, 63, 50, 51
    RING = 64
    WA = 64
    sX, sK, sV, sWQ, sWO, sDBG, sWS = 4, 6, 8, 10, 12, 48, 50
    rK, rV, rW = 16, 20, 24
    sW, sH, sB, sJ7, sN, sWP, sHF, sT, sT2, sU0, sOFF, sIT = 32, 33, 34, 35, 36, 37, 38, 39, 40, 41, 42, 43
    sM1, sM0, sMK = "s[44:45]", "s[46:47]", "s[52:53]"
    s16, s5, sCUR, sNXT, sNM = 54, 55, 56, 57, 58
    st.mark()
    a("s_load_dwordx8 s[4:11], s[0:1], 0")
    a("s_load_dwordx2 s[12:13], s[0:1], 32")
    a("s_load_dwordx4 s[48:51], s[0:1], 104")
    a("v_lshrrev_b32 v1, 6, v0")
    a(f"v_readfirstlane_b32 s{sW}, v1")
    a(f"s_sub_u32 s3, s2, {NB}")
    a(f"s_and_b32 s{sH}, s3, 7")
    a(f"s_lshl_b32 s{sH}, s{sH}, 2")
    a(f"s_lshr_b32 s3, s3, 3")
    if P.get("hmap") == 1:
        a(f"s_and_b32 s{sT}, s3, 3")
        a(f"s_add_u32 s{sH}, s{sH}, s{sT}")
        a(f"s_lshr_b32 s{sJ7}, s3, 2")
    else:
        a(f"s_mul_i32 s{sT}, s3, 37")
        a(f"s_lshr_b32 s{sT}, s{sT}, 8")
        a(f"s_add_u32 s{sH}, s{sH}, s{sT}")
        a(f"s_mul_i32 s{sT}, s{sT}, 7")
        a(f"s_sub_u32 s{sJ7}, s3, s{sT}")
        if P.get("hmap") == 2:
            a(f"s_xor_b32 s{sH}, s{sH}, 3")
    a(f"s_lshl_b32 s3, s{sJ7}, 3")
    a(f"s_add_u32 s3, s3, s{sW}")
    a(f"s_cmp_ge_u32 s3, 28")
    a(f"s_cselect_b32 s{sB}, 1, 0")
    if P.get("bal"):
        a(f"s_cselect_b32 s61, 2, 0")
        a(f"s_cselect_b32 s{sT}, 586, 0")
        a(f"s_cselect_b32 s{sT2}, 2054, 0")
        a(f"s_max_u32 s{sT}, s{sT}, 584")
        a(f"s_mul_i32 s{sT}, s{sT}, s{sJ7}")
        a(f"s_sub_u32 s{sT}, s{sT}, s{sT2}")
        a(f"s_and_b32 s60, s{sW}, 3")
        a(f"s_cmp_lt_u32 s60, s61")
        a(f"s_cselect_b32 s{sN}, 9, 8")
        a(f"s_min_u32 s61, s61, s60")
        a(f"s_add_u32 s61, s61, 296")
        a(f"s_cmp_lt_u32 s{sW}, 4")
        a(f"s_cselect_b32 s{sN}, 10, s{sN}")
        a(f"s_cselect_b32 s61, 0, s61")
        a(f"s_cselect_b32 s3, 10, 8")
        a(f"s_add_u32 s3, s3, 64")
        a(f"s_add_u32 s{sN}, s{sN}, 64")
        a(f"s_mul_i32 s3, s3, s60")
        a(f"s_add_u32 s3, s3, s61")
        a(f"s_add_u32 s3, s3, s{sT}")
        a(f"s_mov_b32 s{s16}, 0x4000")
        a(f"s_cmp_ge_u32 s{sN}, 74")
        a(f"s_cselect_b32 s{s5}, s{s16}, 0x7f000000")
        a(f"s_cmp_ge_u32 s{sN}, 73")
        a(f"s_cselect_b32 s59, s{s16}, 0x7f000000")
    else:
        a(f"s_cselect_b32 s{sT}, 28, 0")
        a(f"s_sub_u32 s3, s3, s{sT}")
        a(f"s_cmp_lt_u32 s3, 4")
        a(f"s_cselect_b32 s{sN}, 1, 0")
        a(f"s_mov_b32 s{s16}, 0x4000")
        a(f"s_cselect_b32 s{s5}, s{s16}, 0x7f000000")
        a(f"s_add_u32 s{sN}, s{sN}, 73")
        a(f"s_min_u32 s{sT}, s3, 4")
        a(f"s_mul_i32 s3, s3, 73")
        a(f"s_add_u32 s3, s3, s{sT}")
    a(f"s_lshl_b32 s{sT}, s{sB}, 5")
    a(f"s_add_u32 s{sT}, s{sT}, s{sH}")
    a(f"s_lshl_b32 s{sT}, s{sT}, 11")
    a(f"s_add_u32 s{sT}, s{sT}, s3")
    a(f"s_lshl_b32 s{sT}, s{sT}, 10")
    a(f"s_lshl_b32 s{sT2}, s{sN}, 10")
    a(f"s_sub_u32 s{sCUR}, s{sT2}, 0xc000")
    a(f"s_sub_u32 s{sNXT}, s{sT2}, 0x8000")
    a(f"s_and_b32 s{sWP}, s{sW}, 3")
    a(f"s_lshr_b32 s{sHF}, s{sW}, 2")
    a("v_and_b32 v1, 63, v0")
    a(f"v_and_b32 v{VM_}, 15, v0")
    a(f"v_bfe_u32 v{VG}, v0, 4, 2")
    a(f"v_lshlrev_b32 v{VO}, 4, v1")
    for k in range(1, 4):
        a(f"v_add_u32 v{VO+k}, {4096*k}, v{VO}")
    a(f"v_and_b32 v{T4}, 1, v{VG}")
    a(f"v_lshlrev_b32 v{T4}, 4, v{T4}")
    a(f"v_lshl_add_u32 v{VL1}, v{VM_}, 5, v{T4}")
    a(f"s_cmp_eq_u32 s{sJ7}, 3")
    a("s_cselect_b32 s52, -1, 0")
    a("s_cselect_b32 s53, -1, 0")
    a(f"s_cselect_b32 s{sNM}, 0, 1.0")
    a(f"s_lshl_b32 s{sU0}, s{sH}, 2")
    a(f"s_add_u32 s{sIT}, s{sU0}, 128")
    a(f"s_add_u32 s{sU0}, s{sU0}, s{sJ7}")
    a(f"s_cmp_gt_u32 s{sJ7}, 3")
    a(f"s_cselect_b32 s3, 125, 0")
    a(f"s_add_u32 s{sU0}, s{sU0}, s3")
    a(f"v_mov_b32 v{T4}, s{sU0}")
    a(f"v_mov_b32 v{T3}, s{sIT}")
    a(f"v_cmp_lt_u32 vcc, 1, v{VG}")
    a(f"v_cndmask_b32 v{T4}, v{T4}, v{T3}, vcc")
    a(f"s_lshl_b32 s3, s{sW}, 9")
    a(f"s_add_u32 s3, s3, {WS_APART}")
    a(f"v_add_u32 v{VGS}, s3, v{VL1}")
    a(f"v_lshl_add_u32 v{VGS}, v{T4}, 12, v{VGS}")
    a(f"v_lshlrev_b32 v{T4}, 3, v{T4}")
    a(f"v_add_u32 v{VGM}, {WS_AML}, v{T4}")
    for r in range(4):
        a(f"v_mov_b32 v{32+r}, -1")
    a(f"v_lshlrev_b32 v{T2}, 1, v0")
    a(f"v_sub_u32 v{T}, v0, v{VM_}")
    a(f"v_lshlrev_b32 v{T}, 13, v{T}")
    a(f"v_lshl_add_u32 v{VW}, v{VM_}, 4, v{T}")
    a(f"s_mov_b32 s{sOFF}, 0")
    a(f"s_lshl_b32 s3, s{sH}, 8")
    a("s_waitcnt lgkmcnt(0)")
    a("s_mov_b32 exec_hi, s52")
    a(f"global_store_dwordx4 v{VGS}, {vr(32,4)}, s[{sWS}:{sWS+1}] sc1")
    a(f"s_cmp_lg_u32 s{sW}, 0")
    a("s_cbranch_scc1 L_A_mk" + X_)
    a("s_and_b32 exec_hi, s52, 1")
    a("s_mov_b32 exec_lo, 1")
    a(f"global_store_dwordx2 v{VGM}, {vr(32,2)}, s[{sWS}:{sWS+1}] sc1")
    a.label("L_A_mk" + X_)
    a("s_mov_b64 exec, -1")
    vm.issue("x", f"global_load_ushort v{X}, v{T2}, s[{sX}:{sX+1}]")
    vm.issue("x", f"global_load_ushort v{X+1}, v{T2}, s[{sX}:{sX+1}] offset:1024")
    srd(a, rK, sK, f"s{sT}", f"s{sT2}")
    srd(a, rW, sWQ, "s3", 0x400000 - 0x2000 + 256)
    srd(a, rV, sV, f"s{sT}", f"s{sT2}")

    nl = [16, 10, 16, 16]
    seq = []
    for it in range(4):
        seq += [("K", it, i) for i in range(nl[it])]
        seq += [("V", it, i) for i in range(nl[it])]

    def ld(p):
        kv, it, i = seq[p]
        r = rK if kv == "K" else rV
        so = ["0", f"s{s5}" if i == 9 else ("s59" if (i == 8 and P.get("bal")) else f"s{s16}"), f"s{sCUR}", f"s{sNXT}"][it]
        dst = vr(RING + 4 * i, 4) if kv == "K" else ar(4 * i, 4)
        tg = f"{kv}{it}_{i}"
        vm.issue(tg, f"buffer_load_dwordx4 {dst}, v{VO + i//4}, s[{r}:{r+3}], {so} offen offset:{(i%4)*1024} nt")

    kf = P["k_first"]
    for p in range(kf):
        ld(p)
    for i in range(16):
        vm.issue(f"wq{i}", f"buffer_load_dwordx4 {ar(WA+4*i,4)}, v{VW}, s[{rW}:{rW+3}], s{sOFF} offen{WN}")
        if P.get("x_wq") and i == 1:
            a(f"s_mov_b32 s{sOFF}, 0x7f000000")
        if i < 15:
            a(f"s_add_u32 s{sOFF}, s{sOFF}, 0x2000")
    for p in range(kf, D0):
        ld(p)
    a(f"v_and_b32 v{T}, 1, v{VM_}")
    a(f"v_lshlrev_b32 v{T}, 4, v{T}")
    a(f"v_mov_b32 v{T3}, 0xffff")
    a(f"v_lshlrev_b32 v{T3}, v{T}, v{T3}")
    a(f"v_bfe_u32 v{T}, v{VM_}, 1, 2")
    for r in range(4):
        a(f"v_cmp_eq_u32 vcc, {r}, v{T}")
        a(f"v_cndmask_b32 v{MASK+r}, 0, v{T3}, vcc")
    make_sel(a, SEL, VM_, T, T3, T4)
    a("s_mov_b32 s44, 0xcccccccc")
    a("s_mov_b32 s45, 0xcccccccc")
    a("s_mov_b32 s46, 0xaaaaaaaa")
    a("s_mov_b32 s47, 0xaaaaaaaa")
    a(f"v_mov_b32 v{VNI}, {NEGINF}")
    a(f"s_lshl_b32 s3, s{sW}, 9")
    a(f"v_add_u32 v{VST}, s3, v{VL1}")
    a(f"v_lshrrev_b32 v{T}, 1, v{VG}")
    a(f"v_lshl_add_u32 v{T}, v{T}, 9, v{VST}")
    a(f"v_add_u32 v{T4}, s3, v{T}")
    a(f"s_lshl_b32 s3, s{sB}, 9")
    a(f"v_lshl_add_u32 v{T}, v{VG}, 11, s3")
    a(f"v_lshl_add_u32 v{VL3}, v{VM_}, 5, v{T}")
    a(f"s_lshl_b32 s3, s{sWP}, 8")
    a(f"s_lshl_b32 s{sT}, s{sHF}, 16")
    a(f"s_add_u32 s3, s3, s{sT}")
    a(f"v_lshl_add_u32 v{T}, v{VM_}, 4, s3")
    a(f"v_lshl_add_u32 v{T5}, v{VG}, 14, v{T}")
    a(f"v_mov_b32 v{MRUN}, {NEGINF}")
    a(f"v_mov_b32 v{LRUN}, 0")
    vm.wait("x")
    a(f"v_lshl_or_b32 v{X}, v{X+1}, 16, v{X}")
    st.mark()

    def mstep(src, i, data, first):
        bc = BC + 4 * (i & 1)
        for r in range(4):
            a(f"v_and_b32_dpp v{bc+r}, v{src}, v{MASK+r} {dpp(f'row_newbcast:{i}')}")
        return bc

    for i in range(16):
        vm.wait(f"wq{i}")
        vpat2(a, SEL, ACC, X, i, ar(WA + 4 * i, 4), i == 0, BC + 4 * (i & 1), T2 + (i & 1))
    a(f"s_lshl_b32 s3, s{sH}, 17")
    srd(a, rW, sWO, "s3", 0x20000)
    a(f"v_mov_b32 v{VW}, v{T5}")
    a(f"s_mov_b32 s{sOFF}, {0x7f000000 if P.get('x_wo') else 0}")
    lg.issue("w", f"ds_write_b128 v{T4}, {vr(ACC,4)}")
    lg.drain()
    a("s_barrier")
    a(f"s_cmp_lg_u32 s{sW}, 0")
    a("s_cbranch_scc1 L_A_c4" + X_)
    a("s_mov_b64 exec, 1")
    a(f"v_mov_b32 v{T2}, 0")
    a(f"v_mov_b32 v{T3}, 1")
    a(f"global_atomic_add v{T2}, v{T3}, s[{sDBG}:{sDBG+1}] offset:{C4} sc1")
    a("s_mov_b64 exec, -1")
    a.label("L_A_c4" + X_)
    for k, off in enumerate((0, 16, 1024, 1040)):
        lg.issue("q", f"ds_read_b128 {vr(32+4*k,4)}, v{VL3} offset:{off}")
    for r in range(4):
        a(f"v_mov_b32 v{ACC+r}, 0")
    lg.drain()
    for k in range(0, 8, 2):
        a(f"v_pk_add_f32 {vr(32+k,2)}, {vr(32+k,2)}, {vr(40+k,2)}")
    for k in range(4):
        a(f"v_permlane32_swap_b32 v{32+k}, v{36+k}")
    for k in (0, 2):
        a(f"v_pk_add_f32 {vr(32+k,2)}, {vr(32+k,2)}, {vr(36+k,2)}")
    a("v_permlane16_swap_b32 v32, v34")
    a("v_permlane16_swap_b32 v33, v35")
    a(f"v_pk_add_f32 {vr(32,2)}, {vr(32,2)}, {vr(34,2)}")
    a(f"v_cvt_pk_bf16_f32 v{Q}, v32, v33")
    a(f"v_mov_b32 v{Q+1}, v{Q}")
    a(f"v_permlane16_swap_b32 v{Q}, v{Q+1}")
    a(f"v_mov_b32 v{Q+2}, v{Q}")
    a(f"v_mov_b32 v{Q+3}, v{Q+1}")
    a(f"v_permlane32_swap_b32 v{Q}, v{Q+2}")
    a(f"v_permlane32_swap_b32 v{Q+1}, v{Q+3}")
    st.mark()

    state = dict(nxt=D0, wo=0)
    LOOP0 = 2 * (nl[0] + nl[1])

    def woload():
        j = state["wo"]
        vm.issue("wo", f"buffer_load_dwordx4 {ar(WA+4*j,4)}, v{VW}, s[{rW}:{rW+3}], s{sOFF} offen offset:{(j%4)*1024}{WN}")
        if j % 4 == 3 and j < 15:
            a(f"s_add_u32 s{sOFF}, s{sOFF}, 0x1000")
        state["wo"] += 1

    def slot_free(q, p, after):
        kv, it, i = seq[q]
        prev = max([r for r in range(q) if seq[r][2] == i and seq[r][0] == kv], default=-1)
        return prev < p or (prev == p and after)

    def advance(p, after):
        Dp = D - (1 if (p % P["hm"]) < P["half"] else 0)
        while state["nxt"] <= p + Dp and slot_free(state["nxt"], p, after):
            if state["nxt"] == LOOP0:
                while state["wo"] < 16:
                    woload()
            ld(state["nxt"])
            state["nxt"] += 1
        if after and p >= P["wo_start"] and (p - P["wo_start"]) % P["wo_every"] == 0 and state["wo"] < 16:
            woload()

    p = 0
    for it in range(3):
        n = nl[it]
        done = []
        if it == 2:
            DE = state["nxt"] - LOOP0
            assert state["wo"] == 16, state
            entry = vm.p[-DE:]
            vm.p = list(entry)
            a(f"s_mov_b32 s{sIT}, 0")
            a.label("L_A_loop" + X_)
        if n < 16:
            for i in range(n, 16):
                a(f"v_mov_b32 v{S[i]}, 0")
        for i in range(n):
            vm.wait(f"K{it}_{i}")
            advance(p, False)
            k = RING + 4 * i
            a(f"v_dot2_f32_bf16 v{S[i]}, v{k}, v{Q}, 0")
            for r in range(1, 4):
                a(f"v_dot2_f32_bf16 v{S[i]}, v{k+r}, v{Q+r}, v{S[i]}")
            advance(p, True)
            if i >= 9 and n == 16:
                tr_step1(a, S, i - 9)
                done.append(i - 9)
            p += 1
        transpose_reduce(a, S, T, sM1, sM0, done)
        s0 = S[0]
        bf16r(a, s0)
        a(f"v_mul_f32 v{s0}, {SCALE}, v{s0}")
        bf16r(a, s0)
        a(f"v_mul_f32 v{s0}, {LOG2E}, v{s0}")
        if n < 16:
            a(f"s_sub_u32 s3, s{sN}, 64")
            a(f"v_cmp_gt_u32 vcc, s3, v{VM_}")
            a(f"v_cndmask_b32 v{s0}, v{VNI}, v{s0}, vcc")
        a(f"v_max_f32 v{T2}, v{s0}, v{MRUN}")
        wave_reduce(a, "v_max_f32", T2, T3)
        a(f"v_sub_f32 v{T3}, v{MRUN}, v{T2}")
        a(f"v_sub_f32 v{T4}, v{s0}, v{T2}")
        a(f"v_exp_f32 v{T3}, v{T3}")
        a(f"v_exp_f32 v{T4}, v{T4}")
        a(f"v_mov_b32 v{MRUN}, v{T2}")
        a(f"v_cvt_pk_bf16_f32 v{PP}, v{T4}, v{T4}")
        a(f"v_fma_f32 v{LRUN}, v{LRUN}, v{T3}, v{T4}")
        for r in range(4):
            a(f"v_mul_f32 v{ACC+r}, v{ACC+r}, v{T3}")
        for i in range(n):
            bc = mstep(PP, i, None, None)
            vm.wait(f"V{it}_{i}")
            advance(p, False)
            a(f"v_mfma_f32_16x16x32_bf16 {vr(ACC,4)}, {vr(bc,4)}, {ar(4*i,4)}, {vr(ACC,4)}")
            advance(p, True)
            p += 1
    assert [t.replace("3_", "2_") for t in vm.p] == entry, (vm.p, entry)
    a(f"s_mov_b32 s{sCUR}, s{sNXT}")
    a(f"s_add_u32 s{sNXT}, s{sNXT}, 0x4000")
    a(f"s_add_u32 s{sIT}, s{sIT}, 1")
    a(f"s_cmp_lt_u32 s{sIT}, 3")
    a("s_cbranch_scc1 L_A_loop" + X_)
    st.mark()
    lg.issue("w", f"ds_write_b128 v{VST}, {vr(ACC,4)} offset:8192")
    wave_reduce(a, "v_add_f32", LRUN, T3)
    a(f"s_lshl_b32 s3, s{sW}, 3")
    a(f"v_mov_b32 v{T}, s3")
    lg.issue("w", f"ds_write_b64 v{T}, {vr(MRUN,2)} offset:12288")
    a(f"s_lshl_b32 s3, s{sHF}, 8")
    a(f"v_and_b32 v{T2}, 63, v0")
    a(f"v_lshl_add_u32 v{T3}, v{T2}, 2, s3")
    a(f"v_cmp_lt_u32 vcc, 1, v{VG}")
    a(f"v_mov_b32 v{T}, 0")
    lg.drain()
    a("s_barrier")
    vm.drain()
    ML = 64
    OV = 80
    for k in range(4):
        lg.issue("ml", f"ds_read_b128 {vr(ML+4*k,4)}, v{T} offset:{12288+16*k}")
    for k in range(4):
        lg.issue("o", f"ds_read2st64_b32 {vr(OV+2*k,2)}, v{T3} offset0:{32+4*k} offset1:{34+4*k}")
    lg.wait("ml")
    MA, MB, MALL, LA, LB = 32, 33, 34, 35, 36
    a(f"v_max3_f32 v{MA}, v{ML}, v{ML+2}, v{ML+4}")
    a(f"v_max3_f32 v{MB}, v{ML+8}, v{ML+10}, v{ML+12}")
    a(f"v_max_f32 v{MA}, v{MA}, v{ML+6}")
    a(f"v_max_f32 v{MB}, v{MB}, v{ML+14}")
    a(f"v_max_f32 v{MALL}, v{MA}, v{MB}")
    a(f"v_cndmask_b32 v{MA}, v{MALL}, v{MA}, {sMK}")
    a(f"v_cndmask_b32 v{MB}, v{MALL}, v{MB}, {sMK}")
    for w in range(8):
        a(f"v_sub_f32 v{ML+2*w}, v{ML+2*w}, v{MA if w < 4 else MB}")
    for w in range(8):
        a(f"v_exp_f32 v{ML+2*w}, v{ML+2*w}")
    lg.wait("o")
    OA = [40, 41]
    for w in range(8):
        d = OA[w >> 2]
        if w % 4 == 0:
            a(f"v_mul_f32 v{d}, v{OV+w}, v{ML+2*w}")
        else:
            a(f"v_fmac_f32 v{d}, v{OV+w}, v{ML+2*w}")
    a(f"v_fmac_f32 v{OA[0]}, s{sNM}, v{OA[1]}")
    a(f"v_cvt_pk_bf16_f32 v{X}, v{OA[0]}, v{OA[1]}")
    for w in range(8):
        L = LA if w < 4 else LB
        if w % 4 == 0:
            a(f"v_mul_f32 v{L}, v{ML+2*w}, v{ML+2*w+1}")
        else:
            a(f"v_fmac_f32 v{L}, v{ML+2*w}, v{ML+2*w+1}")
    a(f"v_fmac_f32 v{LA}, s{sNM}, v{LB}")
    a(f"v_cndmask_b32 v{T4}, v{MA}, v{MB}, vcc")
    a(f"v_cndmask_b32 v{T5}, v{LA}, v{LB}, vcc")
    for i in range(16):
        vpat2(a, SEL, ACC, X, i, ar(WA + 4 * i, 4), i == 0, BC + 4 * (i & 1), T2 + (i & 1))
    a("s_mov_b32 exec_hi, s52")
    a(f"global_store_dwordx4 v{VGS}, {vr(ACC,4)}, s[{sWS}:{sWS+1}] sc1")
    a(f"s_cmp_lg_u32 s{sW}, 0")
    a("s_cbranch_scc1 L_A_noml" + X_)
    a("s_and_b32 exec_hi, s52, 1")
    a("s_mov_b32 exec_lo, 1")
    a(f"global_store_dwordx2 v{VGM}, {vr(T4,2)}, s[{sWS}:{sWS+1}] sc1")
    a.label("L_A_noml" + X_)
    st.mark()
    st.dump(sWS, sW)
    a("s_endpgm")


def gen_B(a, P):
    vm = Cnt(a, "vmcnt", 63)
    lg = Cnt(a, "lgkmcnt", 15)
    st = Stamps(a, P["stamps"], 64)
    sX, sCK, sWQ, sWUK, sWUV, sWO, sGW, sOUT, sDBG, sWS = 4, 8, 10, 12, 14, 16, 18, 52, 54, 56
    rA, rB, rC = 24, 28, 32
    sW, sH, sGRP, sU, sT, sT2, sOFF, sIT, sTO, sWP, sSTEP = 36, 37, 38, 39, 40, 41, 42, 43, 48, 49, 50
    sM1, sM0 = "s[44:45]", "s[46:47]"
    VL, VM_, VG, VZ = 1, 2, 3, 4
    SEL, XP, BC, ACC4 = 8, 12, 16, 24
    T, T2, T3, T4 = 28, 29, 30, 31
    VCK, VSW, VSR, VTR, VXW = 5, 6, 7, 14, 15
    WSZ = 0x400000 - 0x2000 + 256
    st.mark()
    a("s_load_dwordx2 s[4:5], s[0:1], 0")
    a("s_load_dwordx8 s[8:15], s[0:1], 48")
    a("s_load_dwordx4 s[16:19], s[0:1], 80")
    a("s_load_dwordx4 s[52:55], s[0:1], 96")
    a("s_load_dwordx2 s[56:57], s[0:1], 112")
    a("v_lshrrev_b32 v1, 6, v0")
    a(f"v_readfirstlane_b32 s{sW}, v1")
    a(f"s_and_b32 s{sT}, s2, 7")
    a(f"s_lshr_b32 s{sT2}, s2, 3")
    a(f"s_lshl_b32 s{sH}, s{sT}, 2")
    a(f"s_add_u32 s{sH}, s{sH}, s{sT2}")
    a(f"s_lshr_b32 s{sGRP}, s{sW}, 2")
    a(f"s_and_b32 s{sWP}, s{sW}, 3")
    a(f"s_lshl_b32 s{sU}, s{sH}, 1")
    a(f"s_add_u32 s{sU}, s{sU}, s{sGRP}")
    a(f"v_and_b32 v{VL}, 63, v0")
    a(f"v_and_b32 v{VM_}, 15, v0")
    a(f"v_bfe_u32 v{VG}, v0, 4, 2")
    a(f"v_mov_b32 v{VZ}, 0")
    a(f"s_lshl_b32 s3, s{sW}, 6")
    a(f"v_lshl_add_u32 v{T}, v{VG}, 4, s3")
    a(f"v_add_lshl_u32 v{T2}, v{T}, v{VM_}, 1")
    a(f"v_lshlrev_b32 v{T}, 13, v{T}")
    a(f"v_lshl_add_u32 v{VTR}, v{VM_}, 4, v{T}")
    a(f"v_add_u32 v{T}, s3, v{VG}")
    a(f"v_lshlrev_b32 v{T}, 13, v{T}")
    a(f"v_lshl_add_u32 v{T4}, v{VM_}, 4, v{T}")
    a(f"s_lshl_b32 s3, s{sWP}, 8")
    a(f"v_lshl_add_u32 v{T}, v{VM_}, 4, s3")
    a(f"v_lshl_add_u32 v{VCK}, v{VG}, 10, v{T}")
    a(f"v_lshrrev_b32 v{T3}, 1, v{VG}")
    a(f"v_lshlrev_b32 v{T3}, 11, v{T3}")
    a(f"v_lshl_add_u32 v{T3}, v{VM_}, 5, v{T3}")
    a(f"v_and_b32 v36, 1, v{VG}")
    a(f"v_lshl_add_u32 v{T3}, v36, 4, v{T3}")
    a(f"s_lshl_b32 s3, s{sU}, 12")
    a(f"s_lshl_b32 s{sT}, s{sWP}, 9")
    a(f"s_add_u32 s3, s3, s{sT}")
    a(f"s_add_u32 s3, s3, {WS_BOUT}")
    a(f"v_add_u32 v{T3}, s3, v{T3}")
    for r in range(4):
        a(f"v_mov_b32 v{32+r}, -1")
    a(f"s_lshl_b32 s{sT2}, s{sH}, 8")
    a(f"s_lshl_b32 s{sT}, s{sU}, 18")
    a(f"s_mov_b32 s{sOFF}, 0")
    a("s_waitcnt lgkmcnt(0)")
    a(f"global_store_dwordx4 v{T3}, {vr(32,4)}, s[{sWS}:{sWS+1}] sc1")
    vm.issue("x", f"global_load_ushort v{XP}, v{T2}, s[{sX}:{sX+1}]")
    vm.issue("x", f"global_load_ushort v{XP+1}, v{T2}, s[{sX}:{sX+1}] offset:1024")
    srd(a, rA, sWQ, f"s{sT2}", WSZ)
    for i in range(16):
        vm.issue(f"wq{i}", f"buffer_load_dwordx4 {ar(4*i,4)}, v{VTR}, s[{rA}:{rA+3}], s{sOFF} offen nt")
        if i < 15:
            a(f"s_add_u32 s{sOFF}, s{sOFF}, 0x2000")
    srd(a, rB, sWUK, f"s{sT2}", WSZ)
    a(f"s_mov_b32 s{sOFF}, 0")
    UK = 64
    for i in range(16):
        vm.issue(f"uk{i}", f"buffer_load_dwordx4 {vr(UK+4*i,4)}, v{T4}, s[{rB}:{rB+3}], s{sOFF} offen nt")
        if i < 15:
            a(f"s_add_u32 s{sOFF}, s{sOFF}, 0x8000")
    srd(a, rC, sCK, f"s{sT}", 0x40000)
    STG = [64, 96]

    def ckload(buf, i):
        vm.issue(f"ck{buf}", f"buffer_load_dwordx4 {ar(STG[buf]+4*i,4)}, v{VCK}, s[{rC}:{rC+3}], s{sTO} offen nt")
        a(f"s_add_u32 s{sTO}, s{sTO}, s{sSTEP}")

    a(f"s_mov_b32 s{sTO}, 0")
    a(f"s_mov_b32 s{sSTEP}, 0x1000")
    make_sel(a, SEL, VM_, T, T2, T3)
    a("s_mov_b32 s44, 0xcccccccc")
    a("s_mov_b32 s45, 0xcccccccc")
    a("s_mov_b32 s46, 0xaaaaaaaa")
    a("s_mov_b32 s47, 0xaaaaaaaa")
    a(f"v_lshrrev_b32 v{T}, 1, v{VG}")
    a(f"v_lshlrev_b32 v{T}, 9, v{T}")
    a(f"v_lshl_add_u32 v{T}, v{VM_}, 5, v{T}")
    a(f"v_and_b32 v{T2}, 1, v{VG}")
    a(f"v_lshl_add_u32 v{T}, v{T2}, 4, v{T}")
    a(f"s_lshl_b32 s3, s{sW}, 10")
    a(f"s_add_u32 s3, s3, {LDS_XCH}")
    a(f"v_add_u32 v{VXW}, s3, v{T}")
    vm.wait("x")
    a(f"v_lshl_or_b32 v{XP}, v{XP+1}, 16, v{XP}")
    for i in range(16):
        vm.wait(f"wq{i}")
        vpat2(a, SEL, ACC4, XP, i, ar(4 * i, 4), i == 0, BC + 4 * (i & 1), T + (i & 1))
        if i >= 16 - P["ck_early"]:
            pass
    lg.issue("w", f"ds_write_b128 v{VXW}, {vr(ACC4,4)}")
    for j in range(P["ck_pre"]):
        ckload(j // 8, j % 8)
    a(f"v_and_b32 v{T}, 255, v0")
    a(f"v_lshlrev_b32 v{T2}, 2, v{T}")
    a(f"v_add_u32 v{T2}, {LDS_XCH}, v{T2}")
    a(f"v_lshlrev_b32 v{T3}, 1, v{T}")
    a(f"v_add_u32 v{T3}, {LDS_XCH+8192}, v{T3}")
    a(f"v_lshlrev_b32 v{T}, 4, v{VM_}")
    a(f"v_add_u32 v{T}, {LDS_XCH+8192}, v{T}")
    lg.drain()
    a("s_barrier")
    for k in range(4):
        lg.issue("r", f"ds_read2st64_b32 {vr(32+2*k,2)}, v{T2} offset0:{8*k} offset1:{8*k+4}")
    lg.drain()
    a(f"v_pk_add_f32 {vr(32,2)}, {vr(32,2)}, {vr(34,2)}")
    a(f"v_pk_add_f32 {vr(36,2)}, {vr(36,2)}, {vr(38,2)}")
    a(f"v_pk_add_f32 {vr(32,2)}, {vr(32,2)}, {vr(36,2)}")
    a(f"v_add_f32 v32, v32, v33")
    a(f"v_cvt_pk_bf16_f32 v32, v32, v32")
    lg.issue("w", f"ds_write_b16 v{T3}, v32")
    lg.drain()
    a("s_barrier")
    QB = 16
    lg.issue("r", f"ds_read_b128 {vr(QB,4)}, v{T}")
    lg.issue("r", f"ds_read_b128 {vr(QB+4,4)}, v{T} offset:256")
    lg.drain()
    S0 = list(range(32, 48))
    S1 = list(range(48, 64))
    for i in range(16):
        vm.wait(f"uk{i}")
        for b, S in ((0, S0), (1, S1)):
            a(f"v_dot2_f32_bf16 v{S[i]}, v{UK+4*i}, v{QB+4*b}, 0")
            for r in range(1, 4):
                a(f"v_dot2_f32_bf16 v{S[i]}, v{UK+4*i+r}, v{QB+4*b+r}, v{S[i]}")
    transpose_reduce(a, S0, T, sM1, sM0)
    transpose_reduce(a, S1, T, sM1, sM0)
    a(f"v_cvt_pk_bf16_f32 v{T2}, v{S0[0]}, v{S1[0]}")
    a(f"s_lshl_b32 s3, s{sH}, 3")
    a(f"s_add_u32 s3, s3, s{sW}")
    a(f"s_lshl_b32 s3, s3, 6")
    a(f"v_lshl_add_u32 v{T}, v{VM_}, 2, v{VG}")
    a(f"v_add_lshl_u32 v{T}, v{T}, s3, 1")
    a(f"v_add_u32 v{T3}, 0x8000, v{T}")
    vm.issue("st", f"global_store_short v{T}, v{T2}, s[{sWS}:{sWS+1}] sc1")
    vm.issue("st", f"global_store_short_d16_hi v{T3}, v{T2}, s[{sWS}:{sWS+1}] sc1")
    st.mark()
    signal(a, "L_B_sig1", VZ, T, sDBG, C1, sW, 0)
    vm.p = []
    for j in range(P["ck_pre"], P["ck_mid"]):
        ckload(j // 8, j % 8)
    AF, QF = 32, 0
    SR, XT, PF = 32, 48, 16
    MRUN, LRUN, ALPHA = 24, 25, 26
    ACC = 64
    VUV = 27
    a(f"v_mov_b32 v{VUV}, v{VTR}")
    a(f"v_mul_u32_u24 v{T}, {STG_STRIDE}, v{VG}")
    a(f"v_lshl_add_u32 v{T}, v{VM_}, 4, v{T}")
    a(f"s_mul_i32 s3, s{sW}, {STG_WAVE}")
    a(f"v_add_u32 v{VSW}, s3, v{T}")
    a(f"v_and_b32 v{T}, 16, v{VL}")
    a(f"v_and_b32 v{T2}, 3, v{VL}")
    a(f"v_lshl_add_u32 v{T}, v{T2}, 2, v{T}")
    a(f"v_bfe_u32 v{T2}, v{VL}, 3, 1")
    a(f"v_lshl_add_u32 v{T}, v{T2}, 1, v{T}")
    a(f"v_bfe_u32 v{T2}, v{VL}, 2, 1")
    a(f"v_add_u32 v{T}, v{T}, v{T2}")
    a(f"v_mul_u32_u24 v{T}, {STG_STRIDE}, v{T}")
    a(f"v_lshrrev_b32 v{T2}, 5, v{VL}")
    a(f"v_lshl_add_u32 v{T}, v{T2}, 4, v{T}")
    a(f"v_add_u32 v{VSR}, s3, v{T}")
    a(f"v_and_b32 v{T}, 12, v{VM_}")
    a(f"v_add_u32 v{T}, v{T}, v{T2}")
    a(f"v_mul_u32_u24 v{T}, {STG_STRIDE}, v{T}")
    a(f"v_and_b32 v{T3}, 1, v{VG}")
    a(f"v_lshl_add_u32 v{T}, v{T3}, 5, v{T}")
    a(f"v_and_b32 v{T3}, 3, v{VM_}")
    a(f"v_lshl_add_u32 v{T}, v{T3}, 3, v{T}")
    a(f"v_add_u32 v{VTR}, s3, v{T}")
    VXR, VXWR = 12, 13
    VXS, VPW, VAW, VAR = 8, 9, 10, 11
    a(f"s_lshl_b32 s3, s{sGRP}, 15")
    a(f"s_add_u32 s3, s3, {LDS_XCH}")
    a(f"v_lshlrev_b32 v{T}, 3, v{T2}")
    a(f"v_xor_b32 v{T}, v{T}, v{VL}")
    a(f"v_lshl_add_u32 v{VXR}, v{T}, 4, s3")
    a(f"s_add_u32 s{sT}, s3, 18432")
    a(f"v_and_b32 v{T}, 31, v{VL}")
    a(f"v_lshl_add_u32 v{VAR}, v{T}, 2, s{sT}")
    a(f"v_and_b32 v{T}, 7, v{VL}")
    a(f"s_lshl_b32 s{sT2}, s{sWP}, 3")
    a(f"v_add_u32 v{T}, s{sT2}, v{T}")
    a(f"v_lshl_add_u32 v{VAW}, v{T}, 2, s{sT}")
    a(f"v_bfe_u32 v{T3}, v{VL}, 3, 1")
    a(f"v_lshl_add_u32 v{T}, v{T3}, 5, v{T}")
    a(f"v_and_b32 v{T3}, 8, v{VL}")
    a(f"v_xor_b32 v{T}, v{T}, v{T3}")
    a(f"v_lshl_add_u32 v{T}, v{T}, 4, s3")
    a(f"v_lshl_add_u32 v{VXS}, v{VG}, 10, v{T}")
    a(f"v_lshrrev_b32 v{T3}, 1, v{VG}")
    a(f"v_lshl_add_u32 v{T}, v{T3}, 10, v{T}")
    a(f"v_and_b32 v{T3}, 1, v{VG}")
    a(f"v_lshl_add_u32 v{VPW}, v{T3}, 3, v{T}")
    a(f"s_lshl_b32 s3, s{sWP}, 12")
    a(f"v_add_u32 v{VXWR}, s3, v{VXR}")
    a(f"v_and_b32 v{T}, 31, v{VL}")
    a(f"v_lshlrev_b32 v{T}, 10, v{T}")
    a(f"v_lshl_add_u32 v{T}, v{T2}, 4, v{T}")
    a(f"s_lshr_b32 s{sT}, s{sH}, 4")
    a(f"s_lshl_b32 s{sT}, s{sT}, 15")
    a(f"s_lshl_b32 s3, s{sWP}, 8")
    a(f"s_add_u32 s3, s3, s{sT}")
    a(f"v_add_u32 v{T4}, s3, v{T}")
    for r in range(64):
        a(f"v_mov_b32 v{ACC+r}, 0")
    a(f"v_mov_b32 v{MRUN}, {NEGINF}")
    a(f"v_mov_b32 v{LRUN}, 0")
    a(f"s_mov_b32 s{sIT}, 0")
    L1 = P["l1"]

    def afreg(s):
        return vr(XT + 4 * s, 4) if s < 4 else ar(AF + 4 * (s - 4), 4)

    def stage_w(buf):
        for i in range(8):
            lg.issue("sw", f"ds_write_b128 v{VSW}, {ar(STG[buf]+4*i,4)} offset:{i*4*STG_STRIDE}")

    def af_read(s0, s1):
        for s in range(s0, s1):
            lg.issue(f"af{s}", f"ds_read_b128 {afreg(s)}, v{VSR} offset:{32*s}")

    def trread(cb):
        for t in range(2):
            for sec in range(2):
                lg.issue(f"tr{cb}{t}", f"ds_read_b64_tr_b16 {ar(AF+8*cb+4*t+2*sec,2)}, v{VTR} offset:{(16*t+2*sec)*STG_STRIDE+cb*64}")

    vm.wait("ck0")
    stage_w(0)
    af_read(0, 8)
    lg.drain()
    poll(a, "L_B_p1", VZ, T, sDBG, C1, NB, sW, sT, P["sleep1"])
    for s in range(8):
        vm.issue("qf", f"global_load_dwordx4 {ar(QF+4*s,4)}, v{T4}, s[{sWS}:{sWS+1}] offset:{32*s} sc1")
    assert P["ck_mid"] >= 8
    for j in range(P["ck_mid"], 16):
        ckload(j // 8, j % 8)
    for i in range(L1):
        ckload(0, i)
    vm.wait("qf")
    st.mark()
    vm.p = ["ck1"] * 8 + ["ck0"] * L1
    lg.p = [f"af{s}" for s in range(4, 8)]
    entry = list(vm.p)
    lentry = list(lg.p)
    XS = SR

    def pm(k, on):
        if P.get("bprof") and on:
            a(f"s_memtime s[{64+2*k}:{65+2*k}]")
            a("s_waitcnt lgkmcnt(0)")
            lg.p = []

    def tile(p, switch, last, prof=False):
        pm(0, prof)
        for s in range(8):
            lg.wait(f"af{s}")
            c = "0" if s == 0 else vr(SR, 16)
            a(f"v_mfma_f32_32x32x16_bf16 {vr(SR,16)}, {afreg(s)}, {ar(QF+4*s,4)}, {c}")
        for i in range(L1, 8):
            ckload(p, i)
        for q in range(4):
            lg.issue("xw", f"ds_write_b128 v{VXWR}, {vr(SR+4*q,4)} offset:{q*1024}")
        lg.drain()
        pm(1, prof)
        a("s_barrier")
        pm(2, prof)
        for w in range(4):
            lg.issue(f"x{w}", f"ds_read_b128 {vr(XS+4*w,4)}, v{VXS} offset:{w*4096}")
        trread(0)
        trread(1)
        if switch:
            a(f"s_cmp_lg_u32 s{sIT}, 2")
            a("s_cbranch_scc1 L_B_nosw")
            a(f"s_lshl_b32 s{sT2}, s{sH}, 8")
            srd(a, rC, sWUV, f"s{sT2}", WSZ)
            a(f"v_swap_b32 v{VCK}, v{VUV}")
            a(f"s_mov_b32 s{sTO}, 0")
            a(f"s_mov_b32 s{sSTEP}, 0x2000")
            a.label("L_B_nosw")
        lg.wait("x1")
        for k in (0, 2):
            a(f"v_pk_add_f32 {vr(XS+k,2)}, {vr(XS+k,2)}, {vr(XS+4+k,2)}")
        lg.wait("x3")
        for k in (0, 2):
            a(f"v_pk_add_f32 {vr(XS+8+k,2)}, {vr(XS+8+k,2)}, {vr(XS+12+k,2)}")
        for k in (0, 2):
            a(f"v_pk_add_f32 {vr(XS+k,2)}, {vr(XS+k,2)}, {vr(XS+8+k,2)}")
        for rnd in range(2):
            for k in range(2):
                a(f"v_cvt_pk_bf16_f32 v{XS+4+k}, v{XS+2*k}, v{XS+2*k+1}")
            mul = SCALE if rnd == 0 else LOG2E
            for k in range(2):
                a(f"v_lshlrev_b32 v{XS+2*k}, 16, v{XS+4+k}")
                a(f"v_and_b32 v{XS+2*k+1}, 0xffff0000, v{XS+4+k}")
            for k in range(4):
                a(f"v_mul_f32 v{XS+k}, {mul}, v{XS+k}")
        a(f"v_max3_f32 v{T}, v{XS}, v{XS+1}, v{MRUN}")
        a(f"v_max3_f32 v{T}, v{XS+2}, v{XS+3}, v{T}")
        a(f"v_max_f32_dpp v{T}, v{T}, v{T} {dpp('row_ror:8')}")
        a(f"v_mov_b32 v{T2}, v{T}")
        a(f"v_permlane16_swap_b32 v{T}, v{T2}")
        a(f"v_max_f32 v{T}, v{T}, v{T2}")
        a(f"v_mov_b32 v{T2}, v{T}")
        a(f"v_permlane32_swap_b32 v{T}, v{T2}")
        a(f"v_max_f32 v{T}, v{T}, v{T2}")
        a(f"v_sub_f32 v{T2}, v{MRUN}, v{T}")
        for k in range(4):
            a(f"v_sub_f32 v{XS+k}, v{XS+k}, v{T}")
        a(f"v_exp_f32 v{T2}, v{T2}")
        for k in range(4):
            a(f"v_exp_f32 v{XS+k}, v{XS+k}")
        a(f"v_mov_b32 v{MRUN}, v{T}")
        for k in range(2):
            a(f"v_cvt_pk_bf16_f32 v{XS+4+k}, v{XS+2*k}, v{XS+2*k+1}")
        lg.issue("pw", f"ds_write_b32 v{VAW}, v{T2}")
        lg.issue("pw", f"ds_write_b64 v{VPW}, {vr(XS+4,2)} offset:16384")
        trread(2)
        trread(3)
        a(f"v_pk_add_f32 {vr(XS,2)}, {vr(XS,2)}, {vr(XS+2,2)}")
        a(f"v_fma_f32 v{LRUN}, v{LRUN}, v{T2}, v{XS}")
        a(f"v_add_f32 v{LRUN}, v{LRUN}, v{XS+1}")
        lg.wait("pw")
        pm(3, prof)
        a("s_barrier")
        pm(4, prof)
        lg.issue("al", f"ds_read_b32 v{ALPHA}, v{VAR}")
        for t in range(2):
            lg.issue(f"pf{t}", f"ds_read_b128 {vr(PF+4*t,4)}, v{VXR} offset:{16384+t*1024}")
        if not last:
            vm.wait(f"ck{1-p}")
            stage_w(1 - p)
            af_read(0, 4)
        lg.wait("al")
        for cb in range(4):
            for k in range(16 * cb, 16 * cb + 16, 2):
                a(f"v_pk_mul_f32 {vr(ACC+k,2)}, {vr(ACC+k,2)}, {vr(ALPHA,2)} op_sel_hi:[1,0]")
            for t in range(2):
                lg.wait(f"pf{t}")
                a(f"v_mfma_f32_32x32x16_bf16 {vr(ACC+16*cb,16)}, {ar(AF+8*cb+4*t,4)}, {vr(PF+4*t,4)}, {vr(ACC+16*cb,16)}")
            if cb == 2 and not last:
                af_read(4, 8)
        if not last:
            lg.wait("af3")
            for i in range(L1):
                ckload(1 - p, i)
        pm(5, prof)
        if P.get("bprof") and prof:
            a(f"v_mov_b32 v{T}, v{ACC+63}")
        pm(6, prof)

    a.label("L_B_loop")
    tile(0, False, False, prof=True)
    tile(1, True, False)
    assert vm.p == entry and (lg.p == lentry), (vm.p, lg.p)
    a(f"s_add_u32 s{sIT}, s{sIT}, 1")
    a(f"s_cmp_lt_u32 s{sIT}, 3")
    a("s_cbranch_scc1 L_B_loop")
    tile(0, False, False)
    tile(1, False, True)
    assert lg.p == []
    st.mark()
    UV = 64
    a(f"s_lshl_b32 s{sT2}, s{sH}, 17")
    a(f"s_lshl_b32 s3, s{sGRP}, 16")
    a(f"s_add_u32 s{sT2}, s{sT2}, s3")
    srd(a, rA, sWO, f"s{sT2}", 0x10000)
    a(f"s_lshl_b32 s3, s{sWP}, 8")
    a(f"v_lshl_add_u32 v{T4}, v{VM_}, 4, s3")
    a(f"v_lshl_add_u32 v{T4}, v{VG}, 14, v{T4}")

    def woloads():
        a(f"s_mov_b32 s{sOFF}, 0")
        for j in range(16):
            a(f"buffer_load_dwordx4 {ar(4*j,4)}, v{T4}, s[{rA}:{rA+3}], s{sOFF} offen offset:{(j%4)*1024} nt")
            if j % 4 == 3 and j < 15:
                a(f"s_add_u32 s{sOFF}, s{sOFF}, 0x1000")

    a(f"s_cmp_lg_u32 s{sW}, 0")
    a("s_cbranch_scc1 L_B_wo0")
    woloads()
    a.label("L_B_wo0")
    a(f"v_add_f32_dpp v{LRUN}, v{LRUN}, v{LRUN} {dpp('row_ror:8')}")
    a(f"v_mov_b32 v{T2}, v{LRUN}")
    a(f"v_permlane16_swap_b32 v{LRUN}, v{T2}")
    a(f"v_add_f32 v{LRUN}, v{LRUN}, v{T2}")
    a(f"v_mov_b32 v{T2}, v{LRUN}")
    a(f"v_permlane32_swap_b32 v{LRUN}, v{T2}")
    a(f"v_add_f32 v{LRUN}, v{LRUN}, v{T2}")
    a(f"v_lshrrev_b32 v{T2}, 5, v{VL}")
    a(f"v_and_b32 v{T3}, 31, v{VL}")
    a(f"v_mul_u32_u24 v{T3}, {STG_STRIDE}, v{T3}")
    a(f"v_lshl_add_u32 v{T3}, v{T2}, 3, v{T3}")
    a(f"s_mul_i32 s3, s{sW}, {STG_WAVE}")
    a(f"v_add_u32 v{T3}, s3, v{T3}")
    for cb in range(4):
        for q in range(4):
            r = ACC + 16 * cb + 4 * q
            d = SR + 2 * ((4 * cb + q) % 8)
            a(f"v_cvt_pk_bf16_f32 v{d}, v{r}, v{r+1}")
            a(f"v_cvt_pk_bf16_f32 v{d+1}, v{r+2}, v{r+3}")
            lg.issue("tw", f"ds_write_b64 v{T3}, {vr(d,2)} offset:{cb*64+q*16}")
    for i in range(8):
        lg.issue(f"tr{i}", f"ds_read_b128 {vr(ACC+4*i,4)}, v{VSW} offset:{i*4*STG_STRIDE}")
    a(f"s_lshl_b32 s{sT}, s{sU}, 15")
    a(f"s_add_u32 s{sT}, s{sT}, {WS_BPART}")
    srd(a, rC, sWS, f"s{sT}", 0x8000)
    a(f"v_and_b32 v{T}, 7, v{VL}")
    a(f"s_lshl_b32 s3, s{sU}, 2")
    a(f"s_add_u32 s3, s3, s{sWP}")
    a(f"s_lshl_b32 s3, s3, 6")
    a(f"s_add_u32 s3, s3, {WS_BML}")
    a(f"v_lshl_add_u32 v{T}, v{T}, 3, s3")
    a(f"global_store_dwordx2 v{T}, {vr(MRUN,2)}, s[{sWS}:{sWS+1}] sc1")
    a(f"s_mov_b32 s{sOFF}, 0")
    for i in range(8):
        lg.wait(f"tr{i}")
        a(f"buffer_store_dwordx4 {vr(ACC+4*i,4)}, v{VUV}, s[{rC}:{rC+3}], s{sOFF} offen sc1")
        if i < 7:
            a(f"s_add_u32 s{sOFF}, s{sOFF}, 0x1000")
    if P["phase"]:
        a(f"s_cmp_lg_u32 s{sGRP}, 0")
        a("s_cbranch_scc1 L_B_ph1")
        a("s_barrier")
        a.label("L_B_ph1")
    signal(a, "L_B_sig2", VZ, T2, sDBG, C2, sW, 0, keep=0)
    vm.p = []
    a(f"s_cmp_eq_u32 s{sW}, 0")
    a("s_cbranch_scc1 L_B_wo1")
    woloads()
    a.label("L_B_wo1")
    st.mark()
    a(f"s_lshl_b32 s{sT}, s{sW}, 18")
    a(f"s_lshl_b32 s3, s{sH}, 10")
    a(f"s_add_u32 s{sT}, s{sT}, s3")
    a(f"s_add_u32 s{sT}, s{sT}, {WS_BPART}")
    srd(a, rC, sWS, f"s{sT}", 0x40000)
    a(f"v_lshlrev_b32 v{VCK}, 4, v{VL}")
    a(f"v_and_b32 v{T3}, 31, v{VL}")
    a(f"s_lshl_b32 s3, s{sGRP}, 13")
    a(f"s_lshl_b32 s{sT}, s{sH}, 3")
    a(f"s_add_u32 s{sT}, s{sT}, {WS_BML}")
    a(f"s_add_u32 s3, s3, s{sT}")
    a(f"v_lshl_add_u32 v{VSW}, v{T3}, 8, s3")
    a(f"s_lshl_b32 s3, s{sW}, 11")
    a(f"s_add_u32 s3, s3, {LDS_XCH}")
    a(f"v_lshl_add_u32 v{VTR}, v{VL}, 5, s3")
    make_sel(a, SEL, VM_, T, T2, T3)
    poll(a, "L_B_p2", VZ, T, sDBG, C2, NB, sW, sT, P["sleep1"], target2=0 if P.get("skipA") else NA)
    st.mark()
    PR, OML = 64, 12
    vm.issue("oml", f"global_load_dwordx2 {vr(OML,2)}, v{VSW}, s[{sWS}:{sWS+1}] sc1")
    a(f"s_mov_b32 s{sOFF}, 0")
    for i in range(8):
        vm.issue(f"pr{i}", f"buffer_load_dwordx4 {vr(PR+4*i,4)}, v{VCK}, s[{rC}:{rC+3}], s{sOFF} offen sc1")
        if i < 7:
            a(f"s_add_u32 s{sOFF}, s{sOFF}, 0x8000")
    vm.wait("oml")
    MM, TT = 6, 7
    a(f"v_mov_b32 v{MM}, v{OML}")
    for c in ("row_ror:8", "row_ror:4", "row_ror:2", "row_ror:1"):
        a(f"v_max_f32_dpp v{MM}, v{MM}, v{MM} {dpp(c)}")
    a(f"v_mov_b32 v{TT}, v{MM}")
    a(f"v_permlane16_swap_b32 v{MM}, v{TT}")
    a(f"v_max_f32 v{MM}, v{MM}, v{TT}")
    a(f"v_sub_f32 v{OML}, v{OML}, v{MM}")
    a(f"v_exp_f32 v{OML}, v{OML}")
    a(f"v_mul_f32 v{MM}, v{OML}, v{OML+1}")
    for c in ("row_ror:8", "row_ror:4", "row_ror:2", "row_ror:1"):
        a(f"v_add_f32_dpp v{MM}, v{MM}, v{MM} {dpp(c)}")
    a(f"v_mov_b32 v{TT}, v{MM}")
    a(f"v_permlane16_swap_b32 v{MM}, v{TT}")
    a(f"v_add_f32 v{MM}, v{MM}, v{TT}")
    a(f"v_rcp_f32 v{MM}, v{MM}")
    a(f"v_mul_f32 v{OML}, v{OML}, v{MM}")
    a(f"s_lshl_b32 s3, s{sWP}, 3")
    SWT = 84
    for i in range(8):
        a(f"v_readlane_b32 s{SWT+i}, v{OML}, s3")
        if i < 7:
            a("s_add_u32 s3, s3, 1")
    OA = 32
    for i in range(8):
        vm.wait(f"pr{i}")
        for k in range(4):
            a(f"v_lshlrev_b32 v{MM}, 16, v{PR+4*i+k}")
            a(f"v_and_b32 v{TT}, 0xffff0000, v{PR+4*i+k}")
            if i == 0:
                a(f"v_mul_f32 v{OA+2*k}, s{SWT}, v{MM}")
                a(f"v_mul_f32 v{OA+2*k+1}, s{SWT}, v{TT}")
            else:
                a(f"v_fmac_f32 v{OA+2*k}, s{SWT+i}, v{MM}")
                a(f"v_fmac_f32 v{OA+2*k+1}, s{SWT+i}, v{TT}")
    lg.issue("w", f"ds_write_b128 v{VTR}, {vr(OA,4)}")
    lg.issue("w", f"ds_write_b128 v{VTR}, {vr(OA+4,4)} offset:16")
    a(f"v_lshl_add_u32 v{T}, v{VG}, 4, v{VM_}")
    a(f"s_lshl_b32 s3, s{sW}, 8")
    a(f"s_add_u32 s3, s3, {LDS_XCH}")
    a(f"v_lshl_add_u32 v{T}, v{T}, 2, s3")
    lg.drain()
    a("s_barrier")
    R = 40
    for k in range(4):
        lg.issue("r", f"ds_read2st64_b32 {vr(R+2*k,2)}, v{T} offset0:{16*k} offset1:{16*k+8}")
    lg.drain()
    for b in range(2):
        a(f"v_pk_add_f32 {vr(R+4*b,2)}, {vr(R+4*b,2)}, {vr(R+4*b+2,2)}")
        a(f"v_add_f32 v{R+4*b}, v{R+4*b}, v{R+4*b+1}")
    a(f"v_cvt_pk_bf16_f32 v{XP}, v{R}, v{R+4}")
    for i in range(16):
        vpat2(a, SEL, ACC4, XP, i, ar(UV + 4 * i, 4), i == 0, BC + 4 * (i & 1), T + (i & 1))
    lg.issue("w", f"ds_write_b128 v{VXW}, {vr(ACC4,4)} offset:16384")
    a(f"v_lshl_add_u32 v{T}, v{VG}, 4, v{VM_}")
    a(f"s_lshl_b32 s3, s{sGRP}, 8")
    a(f"s_add_u32 s3, s3, {LDS_XCH+16384}")
    a(f"v_lshl_add_u32 v{T}, v{T}, 2, s3")
    lg.drain()
    a("s_barrier")
    for w in range(8):
        lg.issue("r", f"ds_read2st64_b32 {vr(R+2*w,2)}, v{T} offset0:{4*w} offset1:{4*w+2}")
    lg.drain()
    for k in range(0, 8, 2):
        a(f"v_pk_add_f32 {vr(R+k,2)}, {vr(R+k,2)}, {vr(R+8+k,2)}")
    for k in range(0, 4, 2):
        a(f"v_pk_add_f32 {vr(R+k,2)}, {vr(R+k,2)}, {vr(R+4+k,2)}")
    a(f"v_pk_add_f32 {vr(R,2)}, {vr(R,2)}, {vr(R+2,2)}")
    a(f"v_cvt_pk_bf16_f32 v{XP}, v{R}, v{R+1}")
    for i in range(16):
        vpat2(a, SEL, ACC4, XP, i, ar(4 * i, 4), i == 0, BC + 4 * (i & 1), T + (i & 1))
    a(f"v_lshrrev_b32 v{T3}, 1, v{VG}")
    a(f"v_lshlrev_b32 v{T3}, 11, v{T3}")
    a(f"v_lshl_add_u32 v{T3}, v{VM_}, 5, v{T3}")
    a(f"v_and_b32 v{T4}, 1, v{VG}")
    a(f"v_lshl_add_u32 v{T3}, v{T4}, 4, v{T3}")
    a(f"s_lshl_b32 s3, s{sU}, 12")
    a(f"s_lshl_b32 s{sT}, s{sWP}, 9")
    a(f"s_add_u32 s3, s3, s{sT}")
    a(f"s_add_u32 s3, s3, {WS_BOUT}")
    a(f"v_add_u32 v{T3}, s3, v{T3}")
    a(f"global_store_dwordx4 v{T3}, {vr(ACC4,4)}, s[{sWS}:{sWS+1}] sc1")
    vm.p = []
    if st.on:
        st.n = 5
        st.mark()
    a(f"s_cmp_lg_u32 s{sGRP}, 0")
    a("s_cbranch_scc1 L_F_end")
    sB, sCB = 38, 39
    VA, VA2, VB, VB2, VML, VX = 5, 6, 7, 8, 9, 10
    ML, AP, BP, XW, G = 12, 64, 36, 44, 46
    T, T2 = 47, 48
    a(f"s_lshr_b32 s{sB}, s{sH}, 4")
    a(f"s_and_b32 s{sCB}, s{sH}, 15")
    a(f"v_lshlrev_b32 v{T}, 2, v0")
    a(f"s_lshl_b32 s{sT}, s{sB}, 10")
    a(f"v_add_u32 v{VX}, s{sT}, v{T}")
    vm.issue("x", f"global_load_dword v{XW}, v{VX}, s[{sX}:{sX+1}]")
    vm.issue("x", f"global_load_dword v{XW+1}, v{T}, s[{sGW}:{sGW+1}]")
    a(f"v_lshrrev_b32 v{T}, 3, v0")
    a(f"v_and_b32 v{T2}, 7, v0")
    a(f"v_lshlrev_b32 v{T2}, 4, v{T2}")
    a(f"v_lshl_add_u32 v{VA}, v{T}, 14, v{T2}")
    a(f"v_lshl_add_u32 v{T2}, v{T}, 13, v{T2}")
    a(f"s_lshl_b32 s3, s{sCB}, 7")
    a(f"s_lshl_b32 s{sT}, s{sB}, 19")
    a(f"s_add_u32 s{sT}, s{sT}, s3")
    a(f"s_add_u32 s{sT}, s{sT}, {WS_APART + 0x1000}")
    a(f"v_add_u32 v{VA}, s{sT}, v{VA}")
    a(f"v_add_u32 v{VA2}, 0x2000, v{VA}")
    a(f"s_lshl_b32 s{sT}, s{sB}, 11")
    a(f"s_add_u32 s{sT}, s{sT}, s3")
    a(f"s_add_u32 s{sT}, s{sT}, {WS_BOUT}")
    a(f"v_add_u32 v{VB}, s{sT}, v{T2}")
    a(f"v_add_u32 v{VB2}, 0x1000, v{VB}")
    a(f"s_lshl_b32 s{sT}, s{sB}, 10")
    a(f"s_add_u32 s{sT}, s{sT}, {WS_AML}")
    a(f"v_lshl_add_u32 v{VML}, v{T}, 5, s{sT}")
    ws = f"s[{sWS}:{sWS+1}]"

    def fin_loads():
        vm.issue("ml", f"global_load_dwordx4 {vr(ML,4)}, v{VML}, {ws} sc1")
        vm.issue("ml", f"global_load_dwordx4 {vr(ML+4,4)}, v{VML}, {ws} offset:16 sc1")
        for sp in range(4):
            for hf in range(2):
                vm.issue(f"a{sp}", f"global_load_dwordx4 {vr(AP+8*sp+4*hf,4)}, v{VA if sp < 2 else VA2}, {ws} offset:{(sp&1)*4096+hf*2048-4096} sc1")
        vm.issue("b", f"global_load_dwordx4 {vr(BP,4)}, v{VB}, {ws} sc1")
        vm.issue("b", f"global_load_dwordx4 {vr(BP+4,4)}, v{VB2}, {ws} sc1")

    fin_loads()
    vm.wait("x")
    a(f"v_lshlrev_b32 v{T}, 16, v{XW}")
    a(f"v_lshlrev_b32 v{T2}, 16, v{XW+1}")
    a(f"v_and_b32 v{XW}, 0xffff0000, v{XW}")
    a(f"v_and_b32 v{XW+1}, 0xffff0000, v{XW+1}")
    a(f"v_mul_f32 v{T}, v{T}, v{T2}")
    a(f"v_mul_f32 v{T2}, v{XW}, v{XW+1}")
    a(f"v_cvt_pk_bf16_f32 v{T}, v{T}, v{T2}")
    a(f"v_lshlrev_b32 v{T2}, 16, v{T}")
    a(f"v_and_b32 v{T}, 0xffff0000, v{T}")
    a(f"v_add_f32 v{G}, v{T}, v{T2}")
    wave_reduce(a, "v_add_f32", G, T)
    a(f"s_lshl_b32 s3, s{sW}, 2")
    a(f"v_mov_b32 v{T}, s3")
    lg.issue("w", f"ds_write_b32 v{T}, v{G} offset:2048")
    lg.drain()
    a("s_barrier")
    GG = 50
    lg.issue("g", f"ds_read_b128 {vr(GG,4)}, v{VZ} offset:2048")
    lg.drain()
    a(f"v_pk_add_f32 {vr(GG,2)}, {vr(GG,2)}, {vr(GG+2,2)}")
    a(f"v_add_f32 v{G}, v{GG}, v{GG+1}")
    bf16r(a, G)
    a(f"v_mul_f32 v{G}, 0xbfb8aa3b, v{G}")
    a(f"v_exp_f32 v{G}, v{G}")
    a(f"v_add_f32 v{G}, 1.0, v{G}")
    a(f"v_rcp_f32 v{G}, v{G}")
    bf16r(a, G)
    a(f"v_sub_f32 v{GG}, 1.0, v{G}")
    bf16r(a, GG)
    a(f"v_and_b32 v{T}, 7, v0")
    a(f"v_lshrrev_b32 v{T2}, 4, v0")
    a(f"v_lshl_add_u32 v{T}, v{T}, 2, v{T2}")
    a(f"s_lshl_b32 s3, s{sH}, 6")
    a(f"v_lshl_add_u32 v{VX}, v{T}, 1, s3")
    a(f"s_mov_b32 s{sT}, 0")
    a.label("L_F_chk")
    vm.drain()
    regs = list(range(ML, ML + 8)) + list(range(BP, BP + 8)) + ([] if P.get("skipA") else list(range(AP, AP + 32)))
    if P.get("skipA"):
        regs = regs[8:]
    a(f"v_max_u32 v{T}, v{regs[0]}, v{regs[1]}")
    a(f"v_max_u32 v{T2}, v{regs[2]}, v{regs[3]}")
    for k in range(4, len(regs), 4):
        a(f"v_max3_u32 v{T}, v{regs[k]}, v{regs[k+1]}, v{T}")
        a(f"v_max3_u32 v{T2}, v{regs[k+2]}, v{regs[k+3]}, v{T2}")
    a(f"v_max_u32 v{T}, v{T}, v{T2}")
    a(f"v_cmp_eq_u32 vcc, -1, v{T}")
    a("s_cbranch_vccz L_F_go")
    a(f"s_add_u32 s{sT}, s{sT}, 1")
    a(f"s_cmp_ge_u32 s{sT}, 0x8000")
    a("s_cbranch_scc1 L_F_go")
    a("s_mov_b64 exec, vcc")
    a(f"s_sleep {P['sleep3']}")
    fin_loads()
    vm.p = []
    a("s_branch L_F_chk")
    a.label("L_F_go")
    a("s_mov_b64 exec, -1")
    a(f"v_max3_f32 v{T}, v{ML}, v{ML+2}, v{ML+4}")
    a(f"v_max_f32 v{T}, v{T}, v{ML+6}")
    for sp in range(4):
        a(f"v_sub_f32 v{ML+2*sp}, v{ML+2*sp}, v{T}")
    for sp in range(4):
        a(f"v_exp_f32 v{ML+2*sp}, v{ML+2*sp}")
    a(f"v_mul_f32 v{T}, v{ML}, v{ML+1}")
    for sp in range(1, 4):
        a(f"v_fmac_f32 v{T}, v{ML+2*sp}, v{ML+2*sp+1}")
    a(f"v_rcp_f32 v{T}, v{T}")
    for sp in range(4):
        a(f"v_mul_f32 v{ML+2*sp}, v{ML+2*sp}, v{T}")
    vm.wait("a0")
    for k in (0, 2):
        a(f"v_pk_add_f32 {vr(AP+k,2)}, {vr(AP+k,2)}, {vr(AP+4+k,2)}")
    for k in range(4):
        a(f"v_mul_f32 v{AP+k}, v{AP+k}, v{ML}")
    for sp in range(1, 4):
        vm.wait(f"a{sp}")
        for k in (0, 2):
            a(f"v_pk_add_f32 {vr(AP+8*sp+k,2)}, {vr(AP+8*sp+k,2)}, {vr(AP+8*sp+4+k,2)}")
        for k in range(4):
            a(f"v_fmac_f32 v{AP+k}, v{AP+8*sp+k}, v{ML+2*sp}")
    vm.wait("b")
    for k in range(4):
        a(f"v_add_f32 v{AP+4+k}, v{BP+k}, v{BP+4+k}")
    V = [AP + k for k in range(8)]
    for k in range(8):
        a(f"v_add_f32_dpp v{V[k]}, v{V[k]}, v{V[k]} {dpp('row_ror:8')}")
    for k in range(0, 8, 2):
        a(f"v_permlane16_swap_b32 v{V[k]}, v{V[k+1]}")
    for k in range(0, 8, 2):
        a(f"v_add_f32 v{V[k]}, v{V[k]}, v{V[k+1]}")
    for k in range(0, 8, 4):
        a(f"v_permlane32_swap_b32 v{V[k]}, v{V[k+2]}")
    a(f"v_add_f32 v{V[0]}, v{V[0]}, v{V[2]}")
    a(f"v_add_f32 v{V[1]}, v{V[4]}, v{V[6]}")
    a(f"v_lshlrev_b32 v{T}, 3, v0")
    lg.issue("w", f"ds_write_b64 v{T}, {vr(V[0],2)}")
    lg.drain()
    a("s_barrier")
    a(f"s_cmp_lg_u32 s{sW}, 0")
    a("s_cbranch_scc1 L_F_end")
    for w in range(4):
        lg.issue("r", f"ds_read_b64 {vr(AP+2*w,2)}, v{T} offset:{512*w}")
    lg.drain()
    a(f"v_pk_add_f32 {vr(AP,2)}, {vr(AP,2)}, {vr(AP+2,2)}")
    a(f"v_pk_add_f32 {vr(AP+4,2)}, {vr(AP+4,2)}, {vr(AP+6,2)}")
    a(f"v_pk_add_f32 {vr(AP,2)}, {vr(AP,2)}, {vr(AP+4,2)}")
    a(f"v_cvt_pk_bf16_f32 v{T}, v{AP}, v{AP+1}")
    a(f"v_lshlrev_b32 v{AP}, 16, v{T}")
    a(f"v_and_b32 v{AP+1}, 0xffff0000, v{T}")
    a(f"v_mul_f32 v{AP}, v{AP}, v{G}")
    a(f"v_mul_f32 v{AP+1}, v{AP+1}, v{GG}")
    a(f"v_cvt_pk_bf16_f32 v{T}, v{AP}, v{AP+1}")
    a(f"v_lshlrev_b32 v{AP}, 16, v{T}")
    a(f"v_and_b32 v{AP+1}, 0xffff0000, v{T}")
    a(f"v_add_f32 v{AP}, v{AP}, v{AP+1}")
    a(f"v_cvt_pk_bf16_f32 v{AP}, v{AP}, v{AP}")
    a("s_mov_b32 exec_lo, 0x00ff00ff")
    a("s_mov_b32 exec_hi, 0x00ff00ff")
    a(f"global_store_short v{VX}, v{AP}, s[{sOUT}:{sOUT+1}]")
    a.label("L_F_end")
    st.mark()
    st.dump(sWS, sW)
    a("s_endpgm")


def build(P):
    a = Asm()
    a.raw(f"; @launch grid=(256,1,1) block=(512,1,1) lds={LDS_TOTAL}")
    a.raw('.amdgcn_target "amdgcn-amd-amdhsa--gfx950"\n.text')
    a.raw(f".globl {NAME}\n.p2align 8\n.type {NAME},@function\n{NAME}:")
    a(f"s_cmp_lt_u32 s2, {NB}")
    a("s_cbranch_scc1 L_B_entry")
    a(f"s_cmp_lt_u32 s2, {NA+NB}")
    a("s_cbranch_scc1 L_A_entry")
    a("s_endpgm")
    a.label("L_A_entry")
    if P.get("skipA"):
        a("s_endpgm")
    if P.get("diag"):
        a("s_getreg_b32 s3, hwreg(HW_REG_XCC_ID)")
        a("s_and_b32 s3, s3, 7")
        a("s_and_b32 s4, s2, 7")
        a("s_cmp_eq_u32 s3, s4")
        a("s_cbranch_scc1 L_diag_ok")
        a("s_mov_b32 s4, 0")
        a.label("L_diag_loop")
        a("s_sleep 127")
        a("s_add_u32 s4, s4, 1")
        a("s_cmp_lt_u32 s4, 12")
        a("s_cbranch_scc1 L_diag_loop")
        a.label("L_diag_ok")
    if P["ehalf"]:
        if P.get("esel"):
            a(f"s_sub_u32 s3, s2, {NB + 56}")
            a("s_cmp_lt_u32 s3, 56")
        else:
            a("s_bitcmp1_b32 s2, 0")
        a("s_cbranch_scc1 L_A_odd")
        gen_A(a, dict(P, half=P["ehalf"], hm=P["ehm"], D=P["eD"]), "_e")
        a.raw(".p2align 6")
        a.label("L_A_odd")
    gen_A(a, P)
    a.raw(".p2align 6")
    a.label("L_B_entry")
    if P.get("skipB"):
        a("s_endpgm")
    gen_B(a, P)
    a.raw('.section .rodata,"a"')
    a.raw(f""".p2align 6
.amdhsa_kernel {NAME}
  .amdhsa_next_free_vgpr 256
  .amdhsa_next_free_sgpr 102
  .amdhsa_accum_offset 128
  .amdhsa_group_segment_fixed_size 0
  .amdhsa_kernarg_size 120
  .amdhsa_user_sgpr_count 2
  .amdhsa_user_sgpr_kernarg_segment_ptr 1
  .amdhsa_system_sgpr_workgroup_id_x 1
.end_amdhsa_kernel""")
    return a.text()


DEFAULT = dict(D=4, D0=32, w_nt=1, k_first=4, stamps=0, wo_start=4, wo_every=2, sleep3=4, ck_early=0, phase=0, l1=4, l2=3, sleep1=2, half=0, hm=2, ehalf=0, ehm=2, eD=4, ck_pre=16, ck_mid=16)

if __name__ == "__main__":
    out = sys.argv[1]
    P = dict(DEFAULT)
    for kv in sys.argv[2:]:
        k, v = kv.split("=")
        P[k] = int(v)
    open(out, "w").write(build(P))
```
